```python
import torch

def _softmax(x, axis=-1):
    return torch.softmax(x, dim=axis)

def _gelu(x):
    return torch.nn.functional.gelu(x, approximate='tanh')

def _silu(x):
    return torch.nn.functional.silu(x)

def _sigmoid(x):
    return torch.sigmoid(x)

def _layernorm(x, axis=-1, eps=1e-05):
    m = x.mean(dim=axis, keepdim=True)
    v = x.var(dim=axis, keepdim=True, unbiased=False)
    return (x - m) / torch.sqrt(v + eps)

def _scatter_add(tgt, idx, src, axis=0):
    return tgt.clone().index_add_(axis, idx, src)

def _segment_sum(src, seg, n):
    out = torch.zeros((n,) + src.shape[1:], dtype=src.dtype)
    return out.index_add_(0, seg, src)

def _pad(x, pw):
    flat = tuple((v for pair in reversed(pw) for v in pair))
    return torch.nn.functional.pad(x, flat)
kernel_name = 'recurrent_scan__memory_aug_recurrent_mem_tr__swiglu_ffn__prompt'

def setup_inputs():

    _w = lambda a: (lambda t: t.to(torch.bfloat16) if t.is_floating_point() else t)(torch.as_tensor(a))

    def _A_setup():
        B, S, Dm = (1, 2048, 640)
        H, Dh = (32, 128)
        M, seg = (8, 32)
        seg = min(seg, S)
        S = S // seg * seg
        return {'x': _w((lambda *s: torch.randn(*s, dtype=torch.bfloat16) * 0.05)(B, S, Dm)), 'mem0': _w((lambda *s: torch.randn(*s, dtype=torch.bfloat16) * 0.2)(B, M, Dm)), 'Wq': _w((lambda *s: torch.randn(*s, dtype=torch.bfloat16) * 0.8)(Dm, H, Dh) * Dm ** (-0.5)), 'Wk': _w((lambda *s: torch.randn(*s, dtype=torch.bfloat16) * 0.8)(Dm, H, Dh) * Dm ** (-0.5)), 'Wv': _w((lambda *s: torch.randn(*s, dtype=torch.bfloat16) * 0.2)(Dm, H, Dh) * Dm ** (-0.5)), 'Wo': _w((lambda *s: torch.randn(*s, dtype=torch.bfloat16) * 0.2)(H, Dh, Dm) * (H * Dh) ** (-0.5)), 'seg_len': seg}
    _A_in = _A_setup()

    def _B_setup():
        B, S, D, F = (1, 2048, 640, 1728)
        return {'x': _w((lambda *s: torch.randn(*s, dtype=torch.bfloat16) * 0.05)(B, S, D)), 'w_gate': _w((lambda *s: torch.randn(*s, dtype=torch.bfloat16) * 0.1)(D, F)), 'w_up': _w((lambda *s: torch.randn(*s, dtype=torch.bfloat16) * 0.1)(D, F)), 'w_down': _w((lambda *s: torch.randn(*s, dtype=torch.bfloat16) * 0.1)(F, D))}
    _B_in = _B_setup()
    return {'A_x': _A_in['x'], 'A_mem0': _A_in['mem0'], 'A_Wq': _A_in['Wq'], 'A_Wk': _A_in['Wk'], 'A_Wv': _A_in['Wv'], 'A_Wo': _A_in['Wo'], 'A_seg_len': _A_in['seg_len'], 'B_x': _B_in['x'], 'B_w_gate': _B_in['w_gate'], 'B_w_up': _B_in['w_up'], 'B_w_down': _B_in['w_down']}

def reference(A_x, A_mem0, A_Wq, A_Wk, A_Wv, A_Wo, A_seg_len, B_x, B_w_gate, B_w_up, B_w_down):

    def _A_ref(x, mem0, Wq, Wk, Wv, Wo, seg_len):
        B, S, Dm = x.shape
        H, Dh = (Wq.shape[1], Wq.shape[2])
        M = mem0.shape[1]
        scale = Dh ** (-0.5)
        n_seg = S // seg_len
        L = M + seg_len
        idx = torch.arange(L)
        mask = (idx[:, None] < M) | (idx[:, None] >= idx[None, :])
        mem = mem0
        outs = []
        for s in range(n_seg):
            xs = x[:, s * seg_len:(s + 1) * seg_len, :].clone()
            h = torch.concatenate([mem, xs], axis=1)
            q = torch.einsum('btd,dhe->bhte', h, Wq)
            k = torch.einsum('btd,dhe->bhte', h, Wk)
            v = torch.einsum('btd,dhe->bhte', h, Wv)
            scores = torch.einsum('bhqe,bhke->bhqk', q, k) * scale
            scores = torch.where(mask[None, None], scores, -1000000000.0)
            p = _softmax(scores, axis=-1)
            o = torch.einsum('bhqk,bhke->bhqe', p, v)
            o = torch.einsum('bhte,hed->btd', o, Wo)
            mem = o[:, :M, :].clone()
            outs.append(o[:, M:, :])
        return torch.concatenate(outs, axis=1)

    def _B_ref(x, w_gate, w_up, w_down):
        g = _silu(x @ w_gate)
        u = x @ w_up
        return g * u @ w_down
    x = A_x
    xn = _layernorm(x, axis=-1)
    s = _A_ref(xn, A_mem0, A_Wq, A_Wk, A_Wv, A_Wo, A_seg_len)
    g = _silu(_B_ref(xn, B_w_gate, B_w_up, B_w_down))
    return x + s * g
```

```python
import re
TRANS=('v_exp_f32','v_log_f32','v_rcp_f32','v_rsq_f32','v_sqrt_f32','v_sin_f32','v_cos_f32')
def regs(tok):
    tok=tok.strip()
    m=re.fullmatch(r'([vas])(\d+)',tok)
    if m:
        b={'v':0,'a':256,'s':1000}[m.group(1)]; return [b+int(m.group(2))]
    m=re.fullmatch(r'([vas])\[(\d+):(\d+)\]',tok)
    if m:
        b={'v':0,'a':256,'s':1000}[m.group(1)]; return [b+i for i in range(int(m.group(2)),int(m.group(3))+1)]
    if tok=='vcc': return [1106,1107]
    if tok=='exec': return [1126,1127]
    if tok in('exec_lo',): return [1126]
    if tok in('exec_hi',): return [1127]
    if tok=='m0': return [1124]
    return []
class I:
    def __init__(s,text):
        s.text=text; t=text.split(';')[0].strip()
        s.label=None; s.op=None; s.w=set(); s.r=set(); s.cls='none'; s.states=0
        if not t or t.startswith('.'): return
        if t.endswith(':'): s.label=t[:-1]; return
        p=t.split(None,1); op=p[0]; s.op=op
        rest=p[1] if len(p)>1 else ''
        ops=[x.strip() for x in re.split(r',(?![^\[]*\])',rest)] if rest else []
        if ops:
            last=ops[-1].split()
            s.mods=last[1:]; ops[-1]=last[0] if last else ''
        else: s.mods=[]
        s.ops=ops; s.states=1
        R=lambda k:[x for o in k for x in regs(o)]
        if op=='s_nop': s.cls='nop'; s.states=int(ops[0],0)+1; return
        if op.startswith('v_smfmac'):
            s.cls='mfma'; s.w=set(regs(ops[0])); s.A=set(regs(ops[1])); s.B=set(regs(ops[2]))|set(regs(ops[3])); s.C=set(s.w); s.r=s.A|s.B|s.C; s.shape=op
        elif op.startswith('v_mfma'):
            s.cls='mfma'; s.w=set(regs(ops[0])); s.A=set(regs(ops[1])); s.B=set(regs(ops[2])); s.C=set(regs(ops[3])); s.r=s.A|s.B|s.C; s.shape=op
        elif op.startswith('v_'):
            s.cls='valu'
            base=re.sub(r'_(e32|e64|dpp|sdwa)$','',op)
            s.trans=base in TRANS
            s.dpp=op.endswith('_dpp') or 'permlane' in op
            if 'permlane' in op: s.w=set(R(ops[:2])); s.r=set(s.w)
            elif base.startswith('v_cmpx'): s.w={1126,1127}; s.r=set(R(ops))
            elif base.startswith('v_cmp'): s.w=set(regs(ops[0])); s.r=set(R(ops[1:]))
            else:
                s.w=set(regs(ops[0])); s.r=set(R(ops[1:]))
                if base.startswith(('v_fmac','v_mac','v_writelane')) or s.dpp: s.r|=s.w
                if base=='v_cndmask_b32' and len(ops)==3: s.r|={1106,1107}
            s.rl=base in('v_readlane_b32','v_readfirstlane_b32','v_writelane_b32')
        elif op.startswith(('buffer_','global_')):
            s.cls='vmem'; lds='lds' in s.mods
            if op.startswith(('buffer_wbl2','buffer_inv')): return
            if 'load' in op:
                if lds: s.r=set(R(ops))|{1124}; s.lds=True
                else: s.w=set(regs(ops[0])); s.r=set(R(ops[1:]))
            elif 'store' in op:
                s.r=set(R(ops)); s.data=set(regs(ops[0])); s.wide=('x4' in op or 'x3' in op)
            else:
                s.r=set(R(ops));
                if 'sc0' in s.mods: s.w=set(regs(ops[0]))
        elif op.startswith('ds_'):
            s.cls='ds'
            if 'read' in op or 'permute' in op or 'swizzle' in op: s.w=set(regs(ops[0])); s.r=set(R(ops[1:]))
            else: s.r=set(R(ops))
        elif op.startswith('s_'):
            s.cls='salu'
            if op.startswith(('s_cmp','s_bitcmp','s_cbranch','s_branch','s_waitcnt','s_barrier','s_endpgm','s_sleep','s_setprio')): s.r=set(R(ops))
            elif op.startswith('s_load') : s.w=set(regs(ops[0])); s.r=set(R(ops[1:]))
            else:
                s.w=set(regs(ops[0])); s.r=set(R(ops[1:]))
                if 'saveexec' in op: s.w|={1126,1127}
            if op.startswith(('s_cbranch','s_branch')): s.target=ops[0]
        else: raise Exception('unknown op '+text)
def need(prev,cur):
    n=0
    isv=lambda x:x<512
    if prev.cls=='valu':
        wv={x for x in prev.w if isv(x)}; ws={x for x in prev.w if not isv(x)}
        if cur.cls=='mfma' and wv&cur.r: n=max(n,2)
        if cur.cls=='mfma' and ws&{1126,1127}: n=max(n,4)
        if cur.cls=='valu':
            if cur.dpp and wv&cur.r: n=max(n,2)
            if cur.dpp and ws&{1126,1127}: n=max(n,5)
            if cur.rl and wv&cur.r: n=max(n,1)
            if prev.trans and wv&cur.r: n=max(n,1)
            if ws&cur.r: n=max(n,4 if cur.rl else 2)
            if cur.rl and ws&{1126,1127}: n=max(n,4)
        if cur.cls=='vmem' and ws&cur.r: n=max(n,5)
        if cur.cls in('vmem','ds') and prev.trans and wv&cur.r: n=max(n,1)
    if prev.cls=='mfma':
        D=prev.w
        if cur.cls=='mfma':
            if D&(cur.A|cur.B): n=max(n,12)
            if D&cur.C:
                if not(D==cur.C and prev.shape==cur.shape): n=max(n,10)
            if D&cur.w and not D&cur.C: n=max(n,10)
        elif cur.cls in('valu','vmem','ds'):
            if D&(cur.r|cur.w): n=max(n,12)
        if cur.cls=='valu' and prev.C&cur.w: n=max(n,7)
    if prev.cls=='vmem' and getattr(prev,'wide',False):
        if cur.cls=='valu' and prev.data&cur.w: n=max(n,2)
        elif cur.cls in('ds','vmem','mfma') and prev.data&cur.w: n=max(n,1)
    if prev.cls=='salu' and 1124 in prev.w and cur.cls=='vmem' and getattr(cur,'lds',False): n=max(n,1)
    return n
WIN=22
def req(hist,cur):
    n=0
    for p,d in hist:
        k=need(p,cur)-d
        if k>n: n=k
    return n
def adv(hist,ins):
    st=ins.states
    h=[(p,d+st) for p,d in hist if d+st<WIN]
    if ins.cls in('valu','mfma','vmem','salu'): h.append((ins,0))
    return h
def nops(n):
    out=[]
    while n>0:
        k=min(n,8); out.append(I('s_nop %d'%(k-1))); n-=k
    return out
def hazard_pass(lines):
    ins=[I(l) for l in lines]
    out=[]; hist=[]; pend={}; pos={}
    for x in ins:
        if x.label:
            hist=hist+pend.pop(x.label,[]); pos[x.label]=len(out); out.append(x); continue
        if x.op is None: out.append(x); continue
        n=req(hist,x)
        if hasattr(x,'target') and x.target in pos:
            h=adv(hist,x); extra=0; tot=0
            for y in out[pos[x.target]:]:
                if y.op is None: continue
                k=req(h,y)
                extra=max(extra,k); h=[(p,d+y.states) for p,d in h]; tot+=y.states
                if tot>WIN: break
            n=max(n,extra)
        for z in nops(n):
            out.append(z); hist=adv(hist,z)
        out.append(x); hist=adv(hist,x)
        if hasattr(x,'target') and x.target not in pos:
            pend.setdefault(x.target,[]); pend[x.target]+=hist
        if x.op in('s_branch','s_endpgm'): hist=[]
    return [z.text for z in out]
class Asm:
    def __init__(s): s.L=[]; s.n=0
    def __call__(s,t):
        for l in t.split('\n'):
            l=l.strip()
            if l: s.L.append(l)
    def lab(s,p='L'):
        s.n+=1; return '%s_%d'%(p,s.n)
def vr(a,n=1,p='v'):
    return '%s%d'%(p,a) if n==1 else '%s[%d:%d]'%(p,a,a+n-1)
def v(a,n=1): return vr(a,n,'v')
def a(x,n=1): return vr(x,n,'a')
def s(x,n=1): return vr(x,n,'s')
```

```python
from asmlib import *
KN='recurrent_scan__memory_aug_recurrent_mem_tr__swiglu_ffn__prompt'
C_LN=0
def C_KV(rb): return 128*(1+rb)
C_KV0=128; C_Q0=128*17; C_H0=128*33; C_G0=128*49; C_O0=128*65
F_M=0x8000
MEMB=0x20000; PBUF=0x40000; XN=0x100000; KF=0x400000; VF=0x1400000; QF=0x2400000
HB=0x3400000; GB=0x3B00000; KM=0x3E00000; VM=0x4600000; OF=0x4A00000
SPIN=1<<17
SWS=4; SA=8; SB=12; SC=16; SD=20
sWV=24; sID=25; sX=26; sMODE=27
def srd(A,base,arg,nbytes):
    A(f's_load_dwordx2 s[{base}:{base+1}], s[0:1], {arg}\ns_waitcnt lgkmcnt(0)\ns_mov_b32 s{base+2}, {nbytes}\ns_mov_b32 s{base+3}, 0x20000')
def abort(A,code):
    srd(A,SC,96,256)
    A(f'v_mov_b32 v2, {code}\nv_mov_b32 v3, 240\nbuffer_store_dword v2, v3, s[{SC}:{SC+3}], 0 offen sc1\ns_waitcnt vmcnt(0)\ns_endpgm')
def poll_ge(A,soff,target,code,vt=2,st=28):
    L=A.lab('PL'); D=A.lab('PD')
    if isinstance(soff,int): A(f'v_mov_b32 v{vt+1}, {soff}\ns_mov_b32 s{st}, 0'); soff=0
    else: A(f'v_mov_b32 v{vt+1}, 0\ns_mov_b32 s{st}, 0')
    A(f'{L}:')
    A(f'buffer_load_dword v{vt}, v{vt+1}, s[{SWS}:{SWS+3}], {soff} offen sc1\ns_waitcnt vmcnt(0)\nv_readfirstlane_b32 s{st+1}, v{vt}')
    A(f's_cmp_ge_u32 s{st+1}, {target}\ns_cbranch_scc1 {D}\ns_add_u32 s{st}, s{st}, 1\ns_cmp_lt_u32 s{st}, {SPIN}\ns_cbranch_scc1 {L}')
    abort(A,code)
    A(f'{D}:')
def signal(A,soff,vt=2):
    L=A.lab('SG')
    A(f's_waitcnt vmcnt(0)\ns_barrier\ns_cmp_lg_u32 s{sWV}, 0\ns_cbranch_scc1 {L}')
    if isinstance(soff,int): A(f'v_mov_b32 v{vt+1}, {soff}'); soff=0
    else: A(f'v_mov_b32 v{vt+1}, 0')
    A(f'v_mov_b32 v{vt}, 1\ns_mov_b64 exec, 1\nbuffer_atomic_add v{vt}, v{vt+1}, s[{SWS}:{SWS+3}], {soff} offen\ns_mov_b64 exec, -1')
    A(f'{L}:')
def prologue(A):
    A(f'''s_cmp_ge_u32 s2, 256
    s_cbranch_scc1 KEND
    v_lshrrev_b32 v1, 6, v0
    s_nop 0
    v_readfirstlane_b32 s{sWV}, v1''')
    srd(A,SWS,104,0x10000000)
    srd(A,SC,96,256)
    srd(A,SA,8,10240)
    A(f'''v_mov_b32 v4, -1
    v_mov_b32 v5, -1
    v_mov_b32 v6, -1
    v_mov_b32 v7, -1
    v_mov_b32 v8, 0
    v_mov_b32 v9, 0
    v_mov_b32 v10, 0
    v_mov_b32 v11, 0
    v_lshlrev_b32 v2, 4, v0
    s_mul_i32 s28, s2, 2560
    s_add_u32 s28, s28, {PBUF}
    s_mul_i32 s29, s2, 384
    s_mul_i32 s30, s2, 160
    s_add_u32 s30, s30, {MEMB+20480}
    v_cmp_gt_u32 vcc, 160, v0
    s_and_saveexec_b64 s[32:33], vcc
    buffer_store_dwordx4 v[4:7], v2, s[{SWS}:{SWS+3}], s28 offen sc1
    v_cmp_gt_u32 vcc, 24, v0
    s_and_b64 exec, exec, vcc
    buffer_store_dwordx4 v[8:11], v2, s[{SWS}:{SWS+3}], s29 offen sc1
    v_cmp_gt_u32 vcc, 10, v0
    s_and_b64 exec, exec, vcc
    buffer_store_dwordx4 v[4:7], v2, s[{SWS}:{SWS+3}], s30 offen sc1
    s_mov_b64 exec, s[32:33]
    s_cmp_ge_u32 s2, 10
    s_cbranch_scc1 PRO_NOMEM
    s_cmp_lg_u32 s{sWV}, 0
    s_cbranch_scc1 PRO_NOMEM
    v_and_b32 v3, 15, v0
    v_lshrrev_b32 v12, 1, v3
    v_mul_u32_u24 v12, 1280, v12
    v_and_b32 v3, 1, v0
    v_lshl_add_u32 v12, v3, 4, v12
    v_lshrrev_b32 v3, 4, v0
    v_lshl_add_u32 v12, v3, 5, v12
    s_lshl_b32 s28, s2, 7
    buffer_load_dwordx4 v[12:15], v12, s[{SA}:{SA+3}], s28 offen
    s_lshl_b32 s28, s2, 10
    s_add_u32 s28, s28, {MEMB}
    s_add_u32 s29, s28, 10240
    s_waitcnt vmcnt(0)
    v_min_u32 v12, -2, v12
    v_min_u32 v13, -2, v13
    v_min_u32 v14, -2, v14
    v_min_u32 v15, -2, v15
    buffer_store_dwordx4 v[12:15], v2, s[{SWS}:{SWS+3}], s28 offen sc1
    buffer_store_dwordx4 v[12:15], v2, s[{SWS}:{SWS+3}], s29 offen sc1
    PRO_NOMEM:
    s_waitcnt vmcnt(0)
    s_barrier
    s_getreg_b32 s28, hwreg(HW_REG_XCC_ID,0,4)
    s_cmp_lg_u32 s{sWV}, 0
    s_cbranch_scc1 PRO_W
    v_mov_b32 v2, 1
    v_mov_b32 v3, s28
    v_lshlrev_b32 v3, 2, v3
    s_mov_b64 exec, 1
    buffer_atomic_add v2, v3, s[{SC}:{SC+3}], 0 offen sc0
    s_mov_b64 exec, -1
    s_waitcnt vmcnt(0)
    v_readfirstlane_b32 s29, v2
    v_and_b32 v3, 15, v0
    v_lshlrev_b32 v3, 2, v3
    s_mov_b32 s30, 0
    PRO_L:
    buffer_load_dword v4, v3, s[{SC}:{SC+3}], 0 offen sc1
    s_waitcnt vmcnt(0)
    v_add_u32_dpp v5, v4, v4 row_ror:8 row_mask:0xf bank_mask:0xf
    v_add_u32_dpp v5, v5, v5 row_ror:4 row_mask:0xf bank_mask:0xf
    v_add_u32_dpp v5, v5, v5 row_ror:2 row_mask:0xf bank_mask:0xf
    v_add_u32_dpp v5, v5, v5 row_ror:1 row_mask:0xf bank_mask:0xf
    v_readfirstlane_b32 s31, v5
    s_cmp_ge_u32 s31, 256
    s_cbranch_scc1 PRO_D
    s_add_u32 s30, s30, 1
    s_cmp_lt_u32 s30, {SPIN}
    s_cbranch_scc1 PRO_L''')
    abort(A,1)
    A(f'''PRO_D:
    v_mov_b32 v5, s29
    v_lshlrev_b32 v3, 2, v0
    ds_write_b32 v3, v4
    v_mov_b32 v3, 256
    ds_write_b32 v3, v5
    s_waitcnt lgkmcnt(0)
    PRO_W:
    s_barrier
    v_and_b32 v3, 15, v0
    v_lshlrev_b32 v3, 2, v3
    ds_read_b32 v4, v3
    v_mov_b32 v3, 256
    ds_read_b32 v5, v3
    s_waitcnt lgkmcnt(0)
    v_readfirstlane_b32 s29, v5''')
    for j in range(16): A(f'v_readlane_b32 s{32+j}, v4, {j}')
    A('s_barrier\ns_mov_b32 s30, -1\ns_mov_b32 s31, -1')
    for j in range(16):
        n=A.lab('R'); b=A.lab('R')
        A(f'''s_cmp_lt_u32 s{32+j}, 32
        s_cbranch_scc1 {n}
        s_cmp_eq_i32 s30, -1
        s_cbranch_scc0 {b}
        s_mov_b32 s30, {j}
        s_branch {n}
        {b}:
        s_cmp_eq_i32 s31, -1
        s_cbranch_scc0 {n}
        s_mov_b32 s31, {j}
        {n}:''')
    A(f'''s_mov_b32 s{sMODE}, 1
    s_cmp_eq_i32 s31, -1
    s_cbranch_scc0 PRO_F
    s_mov_b32 s{sMODE}, 0
    s_mov_b32 s30, -2
    s_mov_b32 s31, -2
    PRO_F:
    s_mov_b32 s48, 0''')
    for j in range(16):
        n=A.lab('R'); b=A.lab('R')
        A(f'''s_cmp_le_u32 s28, {j}
        s_cbranch_scc1 {n}
        s_add_u32 s48, s48, s{32+j}
        s_cmp_eq_u32 s30, {j}
        s_cbranch_scc1 {b}
        s_cmp_eq_u32 s31, {j}
        s_cbranch_scc0 {n}
        {b}:
        s_sub_u32 s48, s48, 32
        {n}:''')
    A(f'''s_add_u32 s48, s48, s29
    s_cmp_eq_u32 s{sMODE}, 0
    s_cbranch_scc1 PRO_SLOW
    s_mov_b32 s{sX}, 0
    s_cmp_eq_u32 s28, s30
    s_cbranch_scc1 PRO_CAND
    s_mov_b32 s{sX}, 1
    s_cmp_eq_u32 s28, s31
    s_cbranch_scc1 PRO_CAND
    s_mov_b32 s{sID}, s48
    s_branch WORKER
    PRO_CAND:
    s_mov_b32 s{sID}, s29
    s_cmp_lt_u32 s29, 32
    s_cbranch_scc1 REC
    s_sub_u32 s{sID}, s48, 32
    s_branch WORKER
    PRO_SLOW:
    s_lshr_b32 s{sX}, s48, 5
    s_and_b32 s{sID}, s48, 31
    s_cmp_lt_u32 s48, 64
    s_cbranch_scc1 REC
    s_sub_u32 s{sID}, s48, 64
    s_branch WORKER''')
def unpack(A,dst,src,n):
    for i in range(n):
        A(f'v_lshlrev_b32 v{dst+2*i}, 16, v{src+i}\nv_and_b32 v{dst+2*i+1}, 0xffff0000, v{src+i}')
def row_allreduce(A,r,op='v_add_f32'):
    for k in (8,4,2,1): A(f'{op}_dpp v{r}, v{r}, v{r} row_ror:{k} row_mask:0xf bank_mask:0xf')
def ln_stage(A):
    E=A.lab('LNE')
    srd(A,SA,0,2621440)
    A(f'''s_lshl_b32 s28, s{sID}, 2
    s_add_u32 s28, s28, s{sWV}
    s_cmp_ge_u32 s28, 512
    s_cbranch_scc1 {E}
    v_lshrrev_b32 v2, 4, v0
    v_mul_u32_u24 v2, 1280, v2
    v_and_b32 v3, 15, v0
    v_lshl_add_u32 v2, v3, 4, v2
    s_mul_i32 s29, s28, 5120
    s_add_u32 s30, s29, {XN}''')
    for p in range(5): A(f'buffer_load_dwordx4 v[{4+4*p}:{7+4*p}], v2, s[{SA}:{SA+3}], s29 offen offset:{256*p}')
    A('s_waitcnt vmcnt(0)')
    unpack(A,24,4,20)
    A('v_add_f32 v3, v24, v25')
    for i in range(26,64): A(f'v_add_f32 v3, v3, v{i}')
    row_allreduce(A,3)
    A('v_mul_f32 v3, 0x3acccccd, v3')
    for i in range(24,64): A(f'v_sub_f32 v{i}, v{i}, v3')
    A('v_mul_f32 v3, v24, v24')
    for i in range(25,64): A(f'v_fmac_f32 v3, v{i}, v{i}')
    row_allreduce(A,3)
    A('v_mov_b32 v64, 0x3727c5ac\nv_mov_b32 v65, 0x3acccccd\nv_fma_f32 v3, v3, v65, v64\nv_rsq_f32 v3, v3')
    for i in range(24,64): A(f'v_mul_f32 v{i}, v{i}, v3')
    for i in range(20): A(f'v_cvt_pk_bf16_f32 v{4+i}, v{24+2*i}, v{25+2*i}')
    for p in range(5): A(f'buffer_store_dwordx4 v[{4+4*p}:{7+4*p}], v2, s[{SWS}:{SWS+3}], s30 offen offset:{256*p} sc1')
    A(f'{E}:')
    signal(A,C_LN)
    poll_ge(A,C_LN,192,2)
ACC=64; F=[128,144]; VDA=160; VDB=164; VA0=168; VB0=172; VA=173; VB=177
sTA=50; sTB=51; sLDA=52; sLDB=53; sN=54; sTYPE=55; sRB=56; sNB=57; sSTEP=58; sKB=59; sCNT=60; sR=61; sW3=62; sWM=63; sT0=64; sT1=65; sPA=66; sPB=67; sOB=68
def gemm_dma(A):
    A(f's_and_b32 s{sT0}, s{sKB}, 3\ns_lshl_b32 s{sT0}, s{sT0}, 15\ns_lshl_b32 s{sT1}, s{sWV}, 12\ns_add_u32 s{sT0}, s{sT0}, s{sT1}\ns_mov_b32 m0, s{sT0}')
    for i in range(4): A(f'buffer_load_dwordx4 v{VDA+i}, s[{SWS}:{SWS+3}], s{sPA} offen offset:{1024*i} sc1 lds')
    A(f's_add_u32 m0, s{sT0}, 16384')
    for i in range(4): A(f'buffer_load_dwordx4 v{VDB+i}, s[{SB}:{SB+3}], s{sPB} offen offset:{1024*i} lds')
    A(f's_add_u32 s{sPA}, s{sPA}, 128\ns_lshl_b32 s{sT1}, s{sLDB}, 6\ns_add_u32 s{sPB}, s{sPB}, s{sT1}\ns_add_u32 s{sKB}, s{sKB}, 1')
def frag_reads(A,f,kk):
    b=F[f]
    for i in range(2): A(f'ds_read_b128 v[{b+4*i}:{b+4*i+3}], v{VA+kk} offset:{4096*i}')
    for j in range(2):
        for t in range(2): A(f'ds_read_b64_tr_b16 v[{b+8+4*j+2*t}:{b+8+4*j+2*t+1}], v{VB} offset:{8192*j+2048*kk+512*t}')
def frag_mfma(A,f,swap,zero=False):
    b=F[f]
    for i in range(2):
        for j in range(2):
            d=ACC+32*i+16*j; fa=f'v[{b+4*i}:{b+4*i+3}]'; fb=f'v[{b+8+4*j}:{b+8+4*j+3}]'
            x,y=(fb,fa) if swap else (fa,fb)
            A(f'v_mfma_f32_32x32x16_bf16 v[{d}:{d+15}], {x}, {y}, '+('0' if zero else f'v[{d}:{d+15}]'))
def gemm_step(A,swap,first,vm,dma):
    A(f's_waitcnt vmcnt({vm})\ns_barrier')
    A(f's_and_b32 s{sT0}, s{sSTEP}, 3\ns_lshl_b32 s{sT0}, s{sT0}, 15')
    for kk in range(4): A(f'v_add_u32 v{VA+kk}, s{sT0}, v{VA0+kk}')
    A(f'v_add_u32 v{VB}, s{sT0}, v{VB0}')
    frag_reads(A,0,0)
    if dma: gemm_dma(A)
    if not first: frag_mfma(A,1,swap)
    frag_reads(A,1,1); A('s_waitcnt lgkmcnt(6)'); frag_mfma(A,0,swap,zero=first)
    frag_reads(A,0,2); A('s_waitcnt lgkmcnt(6)'); frag_mfma(A,1,swap)
    frag_reads(A,1,3); A('s_waitcnt lgkmcnt(6)'); frag_mfma(A,0,swap)
    A(f's_waitcnt lgkmcnt(0)\ns_add_u32 s{sSTEP}, s{sSTEP}, 1')
def gemm_body(A,swap,name):
    gemm_step(A,swap,True,16,True)
    L=A.lab('GL')
    A(f'{L}:')
    gemm_step(A,swap,False,16,True)
    A(f's_cmp_lt_u32 s{sKB}, s{sN}\ns_cbranch_scc1 {L}')
    gemm_step(A,swap,False,16,False)
    gemm_step(A,swap,False,8,False)
    gemm_step(A,swap,False,0,False)
    frag_mfma(A,1,swap)
def silu(A,x,t):
    A(f'v_mul_f32 v{t}, 0xbfb8aa3b, v{x}\nv_exp_f32 v{t}, v{t}\nv_add_f32 v{t}, 1.0, v{t}\nv_rcp_f32 v{t}, v{t}\nv_mul_f32 v{x}, v{x}, v{t}')
def pack_swap(A,d,o):
    for q in range(4):
        A(f'v_cvt_pk_bf16_f32 v{o+2*q}, v{d+4*q}, v{d+4*q+1}\nv_cvt_pk_bf16_f32 v{o+2*q+1}, v{d+4*q+2}, v{d+4*q+3}')
    for qq in range(2):
        A(f'v_permlane32_swap_b32 v{o+4*qq}, v{o+4*qq+2}\nv_permlane32_swap_b32 v{o+4*qq+1}, v{o+4*qq+3}')
def worker_batch(A):
    A(f'''s_mul_i32 s{sW3}, s{sID}, 21846
    s_lshr_b32 s{sW3}, s{sW3}, 16
    s_mul_i32 s28, s{sW3}, 3
    s_sub_u32 s{sWM}, s{sID}, s28
    s_mov_b32 s{sR}, 0''')
    A(f'''s_lshr_b32 s28, s{sWV}, 1
    s_and_b32 s29, s{sWV}, 1
    v_and_b32 v2, 31, v0
    v_lshrrev_b32 v3, 5, v0
    v_bfe_u32 v4, v0, 1, 3
    s_lshl_b32 s30, s28, 13
    v_lshl_add_u32 v5, v2, 7, s30''')
    for kk in range(4):
        A(f'v_add_u32 v6, {2*kk}, v3\nv_xor_b32 v6, v6, v4\nv_lshl_add_u32 v{VA0+kk}, v6, 4, v5')
    A(f'''v_lshrrev_b32 v2, 5, v0
    v_bfe_u32 v3, v0, 2, 2
    v_lshl_add_u32 v2, v2, 3, v3
    v_lshlrev_b32 v2, 7, v2
    v_bfe_u32 v3, v0, 3, 1
    v_xor_b32 v3, s29, v3
    v_lshl_add_u32 v2, v3, 6, v2
    v_bfe_u32 v3, v0, 4, 1
    v_lshl_add_u32 v2, v3, 5, v2
    v_and_b32 v3, 3, v0
    v_lshl_add_u32 v2, v3, 3, v2
    v_add_u32 v{VB0}, 16384, v2''')
    A('WTASK:')
    A(f'''s_mul_i32 s28, s{sR}, 192
    s_add_u32 s28, s28, s{sID}
    s_cmp_ge_u32 s28, 2048
    s_cbranch_scc1 WBATCH_END
    s_cmp_ge_u32 s28, 960
    s_cbranch_scc1 WD1
    s_mul_i32 s{sRB}, s{sR}, 3
    s_add_u32 s{sRB}, s{sRB}, s{sWM}
    s_mov_b32 s{sNB}, s{sW3}
    s_branch WD_KV
    WD1:
    s_sub_u32 s28, s28, 960
    s_cmp_ge_u32 s28, 64
    s_cbranch_scc1 WD2
    s_mov_b32 s{sRB}, 15
    s_mov_b32 s{sNB}, s28
    WD_KV:
    s_mov_b32 s{sTYPE}, 0
    s_cmp_lt_u32 s{sNB}, 32
    s_cbranch_scc1 WD_K
    s_sub_u32 s{sNB}, s{sNB}, 32
    s_mov_b32 s{sTYPE}, 1''')
    srd(A,SB,32,5242880)
    A(f's_mov_b32 s{sOB}, {VF}\ns_branch WD_QKV\nWD_K:')
    srd(A,SB,24,5242880)
    A(f'''s_mov_b32 s{sOB}, {KF}
    s_branch WD_QKV
    WD2:
    s_sub_u32 s28, s28, 64
    s_cmp_ge_u32 s28, 432
    s_cbranch_scc1 WD3
    s_mul_i32 s29, s28, 607
    s_lshr_b32 s29, s29, 16
    s_mul_i32 s30, s29, 108
    s_sub_u32 s30, s28, s30
    s_and_b32 s31, s30, 3
    s_lshl_b32 s29, s29, 2
    s_add_u32 s{sRB}, s29, s31
    s_lshr_b32 s{sNB}, s30, 2
    s_mov_b32 s{sTYPE}, 3
    s_cmp_lt_u32 s{sWV}, 2
    s_cbranch_scc1 WD_G''')
    srd(A,SB,72,2211840); A('s_branch WD_G2\nWD_G:'); srd(A,SB,64,2211840)
    A(f'''WD_G2:
    s_mov_b32 s{sLDA}, 1280
    s_mov_b32 s{sLDB}, 3456
    s_mov_b32 s{sN}, 10
    s_lshl_b32 s{sTB}, s{sNB}, 7
    s_mul_i32 s{sTA}, s{sRB}, {128*1280}
    s_add_u32 s{sTA}, s{sTA}, {XN}
    s_branch WD_DONE
    WD3:
    s_sub_u32 s28, s28, 432
    s_cmp_ge_u32 s28, 512
    s_cbranch_scc1 WD4
    s_lshr_b32 s29, s28, 7
    s_lshl_b32 s29, s29, 2
    s_and_b32 s30, s28, 3
    s_add_u32 s{sRB}, s29, s30
    s_bfe_u32 s{sNB}, s28, 0x50002
    s_mov_b32 s{sTYPE}, 2''')
    srd(A,SB,16,5242880)
    A(f'''s_mov_b32 s{sOB}, {QF}
    WD_QKV:
    s_mov_b32 s{sLDA}, 1280
    s_mov_b32 s{sLDB}, 8192
    s_mov_b32 s{sN}, 10
    s_lshl_b32 s{sTB}, s{sNB}, 8
    s_lshr_b32 s29, s{sWV}, 1
    s_lshl_b32 s29, s29, 7
    s_add_u32 s{sTB}, s{sTB}, s29
    s_mul_i32 s{sTA}, s{sRB}, {128*1280}
    s_add_u32 s{sTA}, s{sTA}, {XN}
    s_branch WD_DONE
    WD4:
    s_sub_u32 s28, s28, 512
    s_mul_i32 s{sRB}, s28, 13108
    s_lshr_b32 s{sRB}, s{sRB}, 16
    s_mul_i32 s29, s{sRB}, 5
    s_sub_u32 s{sNB}, s28, s29
    s_mov_b32 s{sTYPE}, 4''')
    srd(A,SB,80,2211840)
    A(f'''s_mov_b32 s{sLDA}, 3456
    s_mov_b32 s{sLDB}, 1280
    s_mov_b32 s{sN}, 27
    s_lshl_b32 s{sTB}, s{sNB}, 8
    s_lshr_b32 s29, s{sWV}, 1
    s_lshl_b32 s29, s29, 7
    s_add_u32 s{sTB}, s{sTB}, s29
    s_mul_i32 s{sTA}, s{sRB}, {128*3456}
    s_add_u32 s{sTA}, s{sTA}, {HB}
    s_lshl_b32 s30, s{sRB}, 7
    s_add_u32 s30, s30, {C_H0}''')
    poll_ge(A,'s30',27,3)
    A('WD_DONE:')
    A(f'''v_lshrrev_b32 v2, 3, v0
    s_lshl_b32 s28, s{sWV}, 5
    v_add_u32 v3, s28, v2
    v_and_b32 v4, 7, v0
    v_lshrrev_b32 v5, 4, v0''')
    for i in range(4):
        A(f'''v_add_u32 v6, {8*i}, v3
        v_mul_lo_u32 v6, v6, s{sLDA}
        v_add_u32 v7, {(4*i)&7}, v5
        v_xor_b32 v7, v7, v4
        v_lshl_add_u32 v6, v7, 4, v6
        v_subrev_u32 v{VDA+i}, {1024*i}, v6''')
    A(f'''s_and_b32 s28, s{sWV}, 1
    s_lshl_b32 s28, s28, 5
    v_add_u32 v3, s28, v2
    v_and_b32 v5, 1, v5
    v_lshlrev_b32 v5, 2, v5
    v_xor_b32 v7, v5, v4''')
    for i in range(4):
        A(f'''v_add_u32 v6, {8*i}, v3
        v_mul_lo_u32 v6, v6, s{sLDB}
        v_lshl_add_u32 v6, v7, 4, v6
        v_subrev_u32 v{VDB+i}, {1024*i}, v6''')
    A(f's_mov_b32 s{sPA}, s{sTA}\ns_mov_b32 s{sPB}, s{sTB}\ns_mov_b32 s{sKB}, 0\ns_mov_b32 s{sSTEP}, 0')
    for i in range(3): gemm_dma(A)
    A(f's_cmp_eq_u32 s{sTYPE}, 1\ns_cbranch_scc1 WG_NS')
    gemm_body(A,True,'S')
    A(f's_cmp_eq_u32 s{sTYPE}, 3\ns_cbranch_scc1 WE_F1\ns_cmp_eq_u32 s{sTYPE}, 4\ns_cbranch_scc1 WE_F2')
    def kv_addr():
        A(f'''v_bfe_u32 v2, v0, 4, 1
        v_lshlrev_b32 v2, 10, v2
        v_lshrrev_b32 v3, 5, v0
        v_lshl_add_u32 v2, v3, 8, v2
        v_and_b32 v3, 15, v0
        v_lshl_add_u32 v2, v3, 4, v2
        s_and_b32 s28, s{sWV}, 1
        s_lshl_b32 s28, s28, 11
        v_add_u32 v2, s28, v2
        s_lshl_b32 s28, s{sRB}, 2
        s_and_b32 s29, s{sWV}, 2
        s_add_u32 s28, s28, s29
        s_lshl_b32 s28, s28, 5
        s_add_u32 s28, s28, s{sNB}
        s_lshl_b32 s28, s28, 13
        s_add_u32 s28, s28, s{sOB}''')
    kv_addr()
    for i in range(2):
        for j in range(2):
            o=8+16*i+8*j
            pack_swap(A,ACC+32*i+16*j,o)
            A(f's_add_u32 s29, s28, {i*262144+j*4096}')
            for q in range(2): A(f'buffer_store_dwordx4 v[{o+4*q}:{o+4*q+3}], v2, s[{SWS}:{SWS+3}], s29 offen offset:{512*q} sc1')
    A(f's_cmp_eq_u32 s{sTYPE}, 0\ns_mov_b32 s30, {C_Q0}\ns_cselect_b32 s30, {C_KV0}, s30\ns_branch WE_SIG')
    A('WG_NS:')
    gemm_body(A,False,'N')
    kv_addr()
    for i in range(2):
        for j in range(2):
            o=8+16*i+8*j; d=ACC+32*i+16*j
            for pc,(qa,qb) in enumerate(((0,2),(1,3))):
                for k,q in enumerate((qa,qb)):
                    A(f'v_cvt_pk_bf16_f32 v{o+4*pc+2*k}, v{d+4*q}, v{d+4*q+1}\nv_cvt_pk_bf16_f32 v{o+4*pc+2*k+1}, v{d+4*q+2}, v{d+4*q+3}')
            A(f's_add_u32 s29, s28, {i*262144+j*4096}')
            for q in range(2): A(f'buffer_store_dwordx4 v[{o+4*q}:{o+4*q+3}], v2, s[{SWS}:{SWS+3}], s29 offen offset:{512*q} sc1')
    A(f's_mov_b32 s30, {C_KV0}\ns_branch WE_SIG')
    def rm_addr(ld):
        A(f'''v_and_b32 v2, 31, v0
        s_lshr_b32 s28, s{sWV}, 1
        s_lshl_b32 s28, s28, 6
        v_add_u32 v2, s28, v2
        v_mul_u32_u24 v2, {ld}, v2
        v_lshrrev_b32 v3, 5, v0
        v_lshl_add_u32 v2, v3, 4, v2
        s_and_b32 s28, s{sWV}, 1
        s_lshl_b32 s28, s28, 6
        v_add_u32 v2, s28, v2''')
    A('WE_F1:')
    rm_addr(3456)
    A(f's_mul_i32 s28, s{sRB}, {128*3456}\ns_lshl_b32 s29, s{sNB}, 7\ns_add_u32 s28, s28, s29\ns_add_u32 s28, s28, {HB}')
    for i in range(2):
        d=ACC+32*i
        for r in range(16):
            silu(A,d+r,4+(r&3)); A(f'v_mul_f32 v{d+r}, v{d+r}, v{d+16+r}')
        o=8+8*i
        pack_swap(A,d,o)
        A(f's_add_u32 s29, s28, {i*32*3456}')
        for q in range(2): A(f'buffer_store_dwordx4 v[{o+4*q}:{o+4*q+3}], v2, s[{SWS}:{SWS+3}], s29 offen offset:{32*q} sc1')
    A(f's_mov_b32 s30, {C_H0}\ns_branch WE_SIG')
    A('WE_F2:')
    rm_addr(1280)
    A(f's_mul_i32 s28, s{sRB}, {128*1280}\ns_lshl_b32 s29, s{sNB}, 8\ns_add_u32 s28, s28, s29\ns_add_u32 s28, s28, {GB}')
    for i in range(2):
        for j in range(2):
            d=ACC+32*i+16*j; o=8+16*i+8*j
            for r in range(16): silu(A,d+r,4+(r&3))
            pack_swap(A,d,o)
            A(f's_add_u32 s29, s28, {i*32*1280+j*128}')
            for q in range(2): A(f'buffer_store_dwordx4 v[{o+4*q}:{o+4*q+3}], v2, s[{SWS}:{SWS+3}], s29 offen offset:{32*q} sc1')
    A(f's_mov_b32 s30, {C_G0}')
    A(f'WE_SIG:\ns_lshl_b32 s29, s{sRB}, 7\ns_add_u32 s30, s30, s29')
    signal(A,'s30')
    A(f's_add_u32 s{sR}, s{sR}, 1\ns_branch WTASK\nWBATCH_END:')
```

```python
from asmlib import *
from gen1 import *
WL=0; VXL=122880; MI=131072; EX=141312; OI=149504; KX=151552; SPARE=159744; RED=EX
sS=50; sBUF=51; sBUFN=52; sBUFR=53; sTAG=54; sPW0=55; sPW1=56; sPW2=57; sPR=58; sSL=59; sKVO=60; sLOC=61; sREM=62; sFM=63; sT=64; sT2=65; sT3=66; sCNT=67; sSC=68; sTG=69
EXM=70
SMF='v_smfmac_f32_16x16x64_bf16'
Areg=lambda i:8+4*i
DQ=[28,32]; DK=[36,40]; DV=[44,48]; L=[52,60]
class Q:
    def __init__(s,A,name): s.A=A; s.q=[]; s.name=name
    def add(s,tag,n=1): s.q+= [tag]*n
    def wait(s,tag):
        if tag not in s.q: return
        i=max(k for k,t in enumerate(s.q) if t==tag); n=len(s.q)-1-i
        s.A(f's_waitcnt {s.name}({n})'); s.q=s.q[i+1:]
    def all(s): s.A(f's_waitcnt {s.name}(0)'); s.q=[]
def slotreg(p): return a(8*p,8) if p<32 else v(72+8*(p-32),8)
def slotpair(p,t): return a(8*p+2*t,2) if p<32 else v(72+8*(p-32)+2*t,2)
def P_loc(i,m): return 5*i+m
def P_rem(i,m): return 25+4*i+m
def P_wo(ks,t): return 45+5*ks+t
def ldsslot_addr(k,half):
    return (6,k*8192+1024*half) if k<8 else (7,(k-8)*8192+1024*half)
def read_slot(A,dq,k,dst,tag):
    for hf in range(2):
        r,o=ldsslot_addr(k,hf); A(f'ds_read_b128 v[{dst+4*hf}:{dst+4*hf+3}], v{r} offset:{o}')
    dq.add(tag,2)
TSON=False
def TS(A,k):
    if not TSON: return
    l=A.lab('TS'); A(f's_cmp_lg_u32 s{sS}, 21\ns_cbranch_scc1 {l}\ns_memtime s[{72+2*k}:{73+2*k}]\n{l}:')
def modal(A,fast,slow):
    l1=A.lab('MS'); l2=A.lab('MD')
    A(f's_cmp_eq_u32 s{sMODE}, 0\ns_cbranch_scc1 {l1}'); A(fast); A(f's_branch {l2}\n{l1}:'); A(slow); A(f'{l2}:')
def weights_prologue(A):
    units=[]
    for i in range(5): units+=[('q',0,0,i),('q',1,0,i),('k',0,0,i),('k',1,0,i),('v',0,0,i)]
    for i in range(5): units+=[('q',0,1,i),('q',1,1,i),('k',0,1,i),('k',1,1,i)]
    for ks in range(2):
        for t in range(5): units.append(('o',t,ks,0))
    rem=[('v',k&1,1,k>>1) for k in range(10)]
    units+=rem[5:10]
    units+=[('v',1,0,i) for i in range(5)]
    units+=rem[0:5]
    assert len(units)==70
    SR={'q':8,'k':12,'v':16,'o':20}
    srd(A,8,16,5242880); srd(A,12,24,5242880); srd(A,16,32,5242880); srd(A,20,40,5242880)
    A(f'''v_lshrrev_b32 v2, 3, v0
    s_lshl_b32 s28, s{sWV}, 4
    v_add_u32 v2, s28, v2
    v_bfe_u32 v3, v0, 1, 2
    v_lshrrev_b32 v4, 5, v0
    v_and_b32 v5, 1, v0''')
    for ii in range(2):
        A(f'''v_add_u32 v6, {2*ii}, v4
        v_and_b32 v6, 3, v6
        v_xor_b32 v6, v6, v3
        v_lshl_or_b32 v6, v6, 1, v5
        v_lshlrev_b32 v6, 4, v6
        v_add_u32 v7, {8*ii}, v2
        v_lshl_add_u32 v{58+ii}, v7, 13, v6
        v_mul_u32_u24 v7, 1280, v7
        v_add_u32 v{60+ii}, v7, v6
        v_subrev_u32 v{58+ii}, {1024*ii}, v{58+ii}
        v_subrev_u32 v{60+ii}, {1024*ii}, v{60+ii}''')
    A(f'''v_lshrrev_b32 v2, 5, v0
    v_lshlrev_b32 v2, 4, v2
    v_bfe_u32 v3, v0, 4, 1
    v_lshl_add_u32 v2, v3, 2, v2
    v_bfe_u32 v4, v0, 2, 1
    v_add_u32 v2, v2, v4
    v_bfe_u32 v4, v0, 3, 1
    v_lshl_add_u32 v2, v4, 3, v2
    v_lshlrev_b32 v2, 7, v2
    v_lshl_add_u32 v3, v4, 1, v3
    v_xor_b32 v3, s{sWV}, v3
    v_lshl_add_u32 v2, v3, 5, v2
    v_and_b32 v3, 3, v0
    v_lshl_add_u32 v62, v3, 3, v2
    v_add_u32 v63, 0x10000, v62
    s_lshl_b32 s28, s{sWV}, 11
    v_lshl_add_u32 v64, v0, 4, s28
    v_add_u32 v65, 0x10000, v64''')
    A(f'''s_lshl_b32 s40, s{sID}, 8
    s_mul_i32 s41, s{sX}, {5*64*8192}
    s_sub_u32 s42, {5*64*8192}, s41
    s_add_u32 s41, s41, s40
    s_add_u32 s42, s42, s40
    s_mul_i32 s43, s{sID}, {128*1280}
    s_mul_i32 s44, s{sX}, 640
    s_add_u32 s43, s43, s44
    s_lshl_b32 s45, s{sWV}, 11''')
    def issue(j):
        for i in range(5):
            m,u,rel,ii=units[5*j+i]; pos=(j%3)*5+i
            if m=='o': A(f's_add_u32 s28, s43, {rel*64*1280+u*128}'); vv=60
            else: A(f's_add_u32 s28, s{41+rel}, {ii*64*8192+u*128}'); vv=58
            A(f's_add_u32 m0, s45, {pos*8192}')
            for k in range(2): A(f'buffer_load_dwordx4 v{vv+k}, s[{SR[m]}:{SR[m]+3}], s28 offen offset:{1024*k} lds')
    for j in range(3): issue(j)
    for j in range(14):
        A(f's_waitcnt vmcnt({10*min(2,13-j)})\ns_barrier')
        for i in range(5):
            pos=(j%3)*5+i; r,o=(62,pos*8192) if pos<8 else (63,pos*8192-65536)
            for t in range(4):
                off=o+4096*(t>>1)+256*(t&1)
                dst=slotpair(5*j+i,t) if j<11 else v(8+8*i+2*t,2)
                A(f'ds_read_b64_tr_b16 {dst}, v{r} offset:{off}')
            if i%2==1: A('s_waitcnt lgkmcnt(4)')
        A('s_waitcnt lgkmcnt(0)\ns_barrier')
        if j>=11:
            for i in range(5):
                pos=(j%3)*5+i; r,o=(64,pos*8192) if pos<8 else (65,pos*8192-65536)
                for hf in range(2): A(f'ds_write_b128 v{r}, v[{8+8*i+4*hf}:{8+8*i+4*hf+3}] offset:{o+1024*hf}')
            A('s_waitcnt lgkmcnt(0)')
        if j+3<14: issue(j+3)
def gather(A,n,regs,soff,img,code,wait_only=False):
    Lp=A.lab('GP'); D=A.lab('GD'); C=A.lab('GC')
    if wait_only: A(f's_branch {C}')
    A(f'{Lp}:')
    for i in range(n): A(f'buffer_load_dwordx4 v[{regs+4*i}:{regs+4*i+3}], v0, s[{SWS}:{SWS+3}], s{soff} offen offset:{1024*i} sc1')
    A(f'{C}:\ns_waitcnt vmcnt(0)')
    A(f'v_max3_u32 v68, v{regs}, v{regs+1}, v{regs+2}')
    if n==1: A(f'v_max_u32 v68, v68, v{regs+3}')
    else: A(f'v_max3_u32 v68, v68, v{regs+3}, v{regs+4}\nv_max3_u32 v69, v{regs+5}, v{regs+6}, v{regs+7}\nv_max_u32 v68, v68, v69')
    A(f'v_cmp_eq_u32 vcc, -1, v68\ns_cbranch_vccz {D}\ns_add_u32 s{sCNT}, s{sCNT}, 1\ns_cmp_lt_u32 s{sCNT}, {SPIN}\ns_cbranch_scc1 {Lp}')
    abort(A,code)
    A(f'{D}:')
def rec(A,opts):
    global TSON
    TSON='ts' in opts
    RI=1
    weights_prologue(A)
    A(f'''v_and_b32 v8, 15, v0
    v_lshrrev_b32 v9, 4, v0
    s_lshl_b32 s28, s{sWV}, 4
    v_add_u32 v2, s28, v8
    v_lshlrev_b32 v2, 5, v2
    v_lshl_add_u32 v2, v9, 3, v2
    v_add_u32 v2, {EX}, v2
    v_bfe_u32 v10, v0, 2, 2
    v_lshl_add_u32 v3, v9, 3, v10
    v_lshlrev_b32 v3, 5, v3
    v_and_b32 v10, 3, v0
    v_lshl_add_u32 v3, v10, 3, v3
    v_add_u32 v3, {EX}, v3
    v_lshrrev_b32 v10, 2, v8
    v_and_b32 v11, 1, v0
    v_lshl_add_u32 v10, v10, 1, v11
    v_lshlrev_b32 v10, 1, v10
    v_add_u32 v10, s28, v10
    v_lshrrev_b32 v12, 5, v0
    v_add_u32 v10, v10, v12
    v_lshlrev_b32 v10, 4, v10
    v_and_b32 v12, 1, v9
    v_lshl_add_u32 v4, v12, 3, v10
    v_add_u32 v4, {OI}, v4
    v_mov_b32 v1, 0x4444
    v_mov_b32 v12, 0xeeee
    v_cmp_eq_u32 vcc, 1, v11
    v_cndmask_b32 v1, v1, v12, vcc
    v_lshlrev_b32 v0, 4, v0
    v_add_u32 v5, {MI}, v0
    s_lshl_b32 s28, s{sWV}, 11
    v_add_u32 v6, s28, v0
    v_add_u32 v7, 0x10000, v6''')
    A(f'''s_mov_b32 s{sS}, 0
    s_mov_b32 s{sBUF}, {MEMB}
    s_mov_b32 s{sBUFN}, {MEMB+20480}
    s_mov_b32 s{sBUFR}, {MEMB+40960}
    s_mov_b32 s{sTAG}, 0
    s_lshl_b32 s28, s{sX}, 5
    s_add_u32 s28, s28, s{sID}
    s_mul_i32 s{sPW0}, s28, 10240
    s_lshl_b32 s29, s{sWV}, 9
    s_add_u32 s{sPW0}, s{sPW0}, s29
    s_add_u32 s{sPW0}, s{sPW0}, {PBUF}
    s_add_u32 s{sPW1}, s{sPW0}, 4096
    s_add_u32 s{sPW2}, s{sPW0}, 8192
    s_lshl_b32 s28, s{sX}, 5
    s_lshl_b32 s29, s{sWV}, 3
    s_add_u32 s28, s28, s29
    s_mul_i32 s{sPR}, s28, 10240
    s_lshl_b32 s29, s{sID}, 9
    s_add_u32 s{sPR}, s{sPR}, s29
    s_add_u32 s{sPR}, s{sPR}, {PBUF}
    s_mul_i32 s{sSL}, s{sX}, 5120
    s_lshl_b32 s29, s{sID}, 8
    s_add_u32 s{sSL}, s{sSL}, s29
    s_lshl_b32 s{sKVO}, s{sID}, 13
    s_mul_i32 s28, s{sX}, 5120
    s_sub_u32 s29, {5120+10240}, s28
    s_mov_b32 s{sLOC}, s28
    s_mov_b32 s{sREM}, s29
    s_lshl_b32 s{sFM}, s{sID}, 5
    s_lshl_b32 s28, s{sX}, 4
    s_add_u32 s{sFM}, s{sFM}, s28
    s_lshl_b32 s28, s{sWV}, 2
    s_add_u32 s{sFM}, s{sFM}, s28
    s_add_u32 s{sFM}, s{sFM}, {F_M}
    s_mov_b32 s{sSC}, 0x3e0293ee
    s_mov_b32 s{sCNT}, 0''')
    A(f'''s_sub_u32 s28, s{sWV}, 1
    s_lshl_b32 s28, s28, 11
    s_add_u32 s{sLOC}, s{sLOC}, s28
    s_add_u32 s46, s28, 0
    s_add_u32 s29, s{sWV}, 1
    s_cmp_eq_u32 s{sWV}, 0
    s_cselect_b32 s29, 0, s29
    s_lshl_b32 s29, s29, 10
    s_add_u32 s{sREM}, s{sREM}, s29
    s_add_u32 s47, s29, 5120''')
    def kv_dma(seg_s):
        A(f'''s_lshl_b32 s{sT2}, s{sWV}, 11
        s_add_u32 s{sT}, s{seg_s}, s{sT2}
        s_add_u32 s{sT}, s{sT}, {KF}
        s_add_u32 m0, s{sT2}, {KX}
        s_lshl_b32 s{sT3}, s{sWV}, 10
        buffer_load_dwordx4 v0, s[{SWS}:{SWS+3}], s{sT} offen sc1 lds
        buffer_load_dwordx4 v0, s[{SWS}:{SWS+3}], s{sT} offen offset:1024 sc1 lds
        s_add_u32 s{sT}, s{seg_s}, s{sT3}
        s_add_u32 s{sT}, s{sT}, {VF}
        s_add_u32 m0, s{sT2}, {VXL}
        s_add_u32 s{sT3}, s{sT}, 3072
        buffer_load_dwordx4 v0, s[{SWS}:{SWS+3}], s{sT} offen sc1 lds
        buffer_load_dwordx4 v0, s[{SWS}:{SWS+3}], s{sT3} offen offset:1024 sc1 lds''')
    if 'norecwait' not in opts: poll_ge(A,C_KV0,64,10,vt=8)
    kv_dma(sKVO)
    A('s_waitcnt vmcnt(0)\ns_barrier')
    dq=Q(A,'lgkmcnt')
    A('STEP:')
    TS(A,0)
    for r in range(28,52): A(f'v_mov_b32 v{r}, 0')
    read_slot(A,dq,0,L[0],'L')
    l3=A.lab('LG'); ld=A.lab('LG'); lw=A.lab('LG')
    A(f's_add_u32 s{sT}, s{sBUF}, s{sLOC}\ns_cmp_eq_u32 s{sWV}, 0\ns_cbranch_scc1 {ld}\ns_cmp_eq_u32 s{sWV}, 3\ns_cbranch_scc1 {l3}')
    gather(A,2,8,sT,0,11)
    A(f'v_add_u32 v68, s46, v5\nds_write_b128 v68, v[8:11]\nds_write_b128 v68, v[12:15] offset:1024\ns_branch {ld}\n{l3}:')
    gather(A,1,8,sT,0,12)
    A(f'v_add_u32 v68, s46, v5\nds_write_b128 v68, v[8:11]\n{ld}:')
    dq.all(); A('s_barrier')
    TS(A,1)
    for i in range(5): A(f'ds_read_b128 v[{Areg(i)}:{Areg(i)+3}], v5 offset:{1024*i}'); dq.add(f'A{i}')
    def smf(D,i,B): A(f'{SMF} v[{D}:{D+3}], v[{Areg(i)}:{Areg(i)+3}], {B}, v1')
    A(f's_add_u32 s{sT}, s{sBUF}, s{sREM}')
    for i in range(5):
        dq.wait(f'A{i}')
        for m,D in enumerate((DQ[0],DQ[1],DK[0],DK[1],DV[0])): smf(D,i,slotreg(P_loc(i,m)))
        dq.wait('L')
        smf(DV[1],i,v(L[0],8))
        if i<4: read_slot(A,dq,i+1,L[0],'L')
        if i==RI:
            r1=A.lab('RG')
            A(f'buffer_load_dwordx4 v[60:63], v0, s[{SWS}:{SWS+3}], s{sT} offen sc1\ns_cmp_lg_u32 s{sWV}, 0\ns_cbranch_scc1 {r1}')
            A(f'buffer_load_dwordx4 v[64:67], v0, s[{SWS}:{SWS+3}], s{sT} offen offset:1024 sc1\n{r1}:')
    TS(A,2)
    r1=A.lab('RG'); rd=A.lab('RG')
    A(f's_cmp_lg_u32 s{sWV}, 0\ns_cbranch_scc1 {r1}')
    gather(A,2,60,sT,0,13,wait_only=True)
    A(f'v_add_u32 v68, s47, v5\nds_write_b128 v68, v[60:63]\nds_write_b128 v68, v[64:67] offset:1024\ns_branch {rd}\n{r1}:')
    gather(A,1,60,sT,0,14,wait_only=True)
    A(f'v_add_u32 v68, s47, v5\nds_write_b128 v68, v[60:63]\n{rd}:')
    dq.all(); A('s_barrier')
    TS(A,3)
    for i in range(5): A(f'ds_read_b128 v[{Areg(i)}:{Areg(i)+3}], v5 offset:{5120+1024*i}'); dq.add(f'A{i}')
    read_slot(A,dq,5,L[0],'L0'); read_slot(A,dq,6,L[1],'L1')
    b1=A.lab('B'); b2=A.lab('B'); b3=A.lab('B'); b4=A.lab('B')
    A(f'''s_cmp_eq_u32 s{sS}, 0
    s_cbranch_scc1 {b1}
    s_sub_u32 s{sT}, s{sS}, 1
    s_lshl_b32 s{sT}, s{sT}, 10
    s_add_u32 s{sT}, s{sT}, s{sFM}
    v_mov_b32 v68, 1
    v_mov_b32 v69, 0
    s_mov_b64 exec, 1
    buffer_store_dword v68, v69, s[{SWS}:{SWS+3}], s{sT} offen sc1
    s_mov_b64 exec, -1
    {b1}:
    s_cmp_eq_u32 s{sS}, 63
    s_cbranch_scc1 {b2}
    s_cmp_gt_u32 s{sWV}, 1
    s_cbranch_scc1 {b3}
    s_add_u32 s{sT}, s{sKVO}, {32*8192}
    s_mul_i32 s{sT2}, s{sWV}, {VF-KF}
    s_add_u32 s{sT}, s{sT}, s{sT2}
    s_add_u32 s{sT}, s{sT}, {KF}
    v_lshlrev_b32 v68, 3, v0
    s_mov_b32 m0, {SPARE}
    s_nop 0
    buffer_load_dword v68, s[{SWS}:{SWS+3}], s{sT} offen sc1 lds
    {b3}:
    s_and_b32 s{sT}, s{sS}, 3
    s_cmp_lg_u32 s{sT}, 0
    s_cbranch_scc1 {b2}
    s_cmp_ge_u32 s{sS}, 60
    s_cbranch_scc1 {b2}
    s_lshr_b32 s{sT}, s{sS}, 2
    s_add_u32 s{sT}, s{sT}, 1
    s_lshl_b32 s{sT}, s{sT}, 7
    s_add_u32 s{sT}, s{sT}, {C_KV0}
    s_lshl_b32 s{sT2}, s{sWV}, 8
    s_add_u32 m0, s{sT2}, {SPARE+1024}
    v_mov_b32 v68, 0
    buffer_load_dword v68, s[{SWS}:{SWS+3}], s{sT} offen sc1 lds
    {b2}:
    s_cmp_lg_u32 s{sWV}, 0
    s_cbranch_scc1 {b4}
    s_cmp_ge_u32 s{sID}, 20
    s_cbranch_scc1 {b4}
    v_mov_b32 v68, -1
    v_mov_b32 v69, -1
    v_mov_b32 v70, -1
    v_mov_b32 v71, -1
    s_add_u32 s{sT}, s{sBUFR}, s{sSL}
    s_add_u32 s{sT2}, s{sT}, 10240
    s_mov_b64 exec, 0xffff''')
    modal(A,f'buffer_store_dwordx4 v[68:71], v0, s[{SWS}:{SWS+3}], s{sT} offen',f'buffer_store_dwordx4 v[68:71], v0, s[{SWS}:{SWS+3}], s{sT} offen sc1')
    A(f'buffer_store_dwordx4 v[68:71], v0, s[{SWS}:{SWS+3}], s{sT2} offen sc1\ns_mov_b64 exec, -1\n{b4}:')
    for i in range(5):
        dq.wait(f'A{i}')
        for m,D in enumerate((DQ[0],DQ[1],DK[0],DK[1])): smf(D,i,slotreg(P_rem(i,m)))
    dq.wait('L0'); smf(DV[0],0,v(L[0],8))
    dq.wait('L1'); smf(DV[1],0,v(L[1],8))
    for idx,D in enumerate((DQ[0],DQ[1],DK[0],DK[1])):
        A(f'v_add_f32 v{D}, v{D}, v{D+1}\nv_add_f32 v{D+2}, v{D+2}, v{D+3}\nv_cvt_pk_bf16_f32 v{D}, v{D}, v{D+2}')
        A(f'ds_write_b32 v2, v{D} offset:{4096*(idx>>1)+2048*(idx&1)}'); dq.add('W')
    dq.all(); A('s_barrier')
    TS(A,4)
    SET=[8,52]; S0,S1,SM=28,32,36
    def rdset(j,b):
        for t in range(2): A(f'ds_read_b64_tr_b16 v[{b+2*t}:{b+2*t+1}], v3 offset:{1024*j+128*t}')
        for t in range(2): A(f'ds_read_b64_tr_b16 v[{b+4+2*t}:{b+4+2*t+1}], v3 offset:{4096+1024*j+128*t}')
        for kt in range(2): A(f'ds_read_b128 v[{b+8+4*kt}:{b+8+4*kt+3}], v5 offset:{KX-MI+2048*j+1024*kt}')
        dq.add(f'S{j}',6)
    def mmset(j,b):
        for D,o in ((SM,4),(S0,8),(S1,12)):
            A(f'v_mfma_f32_16x16x32_bf16 v[{D}:{D+3}], v[{b+o}:{b+o+3}], v[{b}:{b+3}], '+('0' if j==0 else f'v[{D}:{D+3}]'))
    rdset(0,SET[0]); rdset(1,SET[1])
    k1=A.lab('K')
    A(f's_cmp_lg_u32 s{sX}, 0\ns_cbranch_scc1 {k1}\ns_lshl_b32 s{sT}, s{sWV}, 10\nv_add_u32 v68, s{sT}, v3')
    for t in range(2): A(f'ds_read_b64_tr_b16 v[{24+2*t}:{24+2*t+1}], v68 offset:{4096+128*t}')
    A(f's_lshr_b32 s{sT2}, s{sKVO}, 1\ns_add_u32 s{sT2}, s{sT2}, s{sT}\ns_add_u32 s{sT2}, s{sT2}, {KM}\ns_waitcnt lgkmcnt(0)')
    A(f'buffer_store_dwordx4 v[24:27], v0, s[{SWS}:{SWS+3}], s{sT2} offen sc1\n{k1}:')
    dq.wait('S0'); mmset(0,SET[0]); rdset(2,SET[0])
    dq.wait('S1'); mmset(1,SET[1]); rdset(3,SET[1])
    dq.wait('S2'); mmset(2,SET[0])
    dq.wait('S3'); mmset(3,SET[1])
    TS(A,5)
    for i in range(1,5): A(f'ds_read_b128 v[{Areg(i)}:{Areg(i)+3}], v5 offset:{5120+1024*i}'); dq.add(f'A{i}')
    read_slot(A,dq,7,L[0],'L0'); read_slot(A,dq,8,L[1],'L1')
    A(f'ds_read_b128 v[68:71], v7 offset:{VXL-65536}\nds_read_b128 v[8:11], v7 offset:{VXL-65536+1024}'); dq.add('VX',2)
    vq=list(range(2,10))
    def vstep():
        if not vq: return
        k=vq.pop(0); i=k>>1
        dq.wait(f'A{i}'); dq.wait(f'L{k&1}')
        smf(DV[k&1],i,v(L[k&1],8))
        if k+2<10: read_slot(A,dq,5+k+2,L[k&1],f'L{k&1}')
    A('v_max3_f32 v38, v28, v29, v30\nv_max3_f32 v39, v31, v32, v33\nv_max3_f32 v40, v34, v35, v36\nv_max3_f32 v38, v38, v39, v37\nv_max_f32 v38, v38, v40')
    vstep()
    def allred(r,t,op):
        A(f'v_mov_b32 v{t}, v{r}\nv_permlane16_swap_b32 v{r}, v{t}\n{op} v{r}, v{r}, v{t}\nv_mov_b32 v{t}, v{r}\nv_permlane32_swap_b32 v{r}, v{t}\n{op} v{r}, v{r}, v{t}')
    allred(38,39,'v_max_f32')
    vstep()
    A(f'v_mul_f32 v38, s{sSC}, v38')
    for r in range(28,38): A(f'v_fma_f32 v{r}, v{r}, s{sSC}, -v38')
    vstep()
    for r in range(28,33): A(f'v_exp_f32 v{r}, v{r}')
    vstep()
    for r in range(33,38): A(f'v_exp_f32 v{r}, v{r}')
    vstep()
    A('v_add_f32 v38, v28, v29\nv_add_f32 v39, v30, v31\nv_add_f32 v40, v32, v33\nv_add_f32 v41, v34, v35\nv_add_f32 v42, v36, v37\nv_add_f32 v38, v38, v39\nv_add_f32 v40, v40, v41\nv_add_f32 v38, v38, v42\nv_add_f32 v38, v38, v40')
    vstep()
    A('v_cvt_pk_bf16_f32 v28, v28, v29\nv_cvt_pk_bf16_f32 v29, v30, v31\nv_cvt_pk_bf16_f32 v30, v32, v33\nv_cvt_pk_bf16_f32 v31, v34, v35\nv_cvt_pk_bf16_f32 v32, v36, v37\nv_mov_b32 v33, 0\nv_mov_b32 v34, 0\nv_mov_b32 v35, v32')
    vstep()
    allred(38,39,'v_add_f32')
    vstep()
    assert not vq
    A('v_rcp_f32 v42, v38')
    dq.wait('VX')
    A('v_mfma_f32_16x16x32_bf16 v[12:15], v[68:71], v[28:31], 0\nv_mfma_f32_16x16x32_bf16 v[16:19], v[8:11], v[28:31], 0')
    for u,D in enumerate(DV): A(f'v_add_f32 v{D}, v{D}, v{D+1}\nv_add_f32 v{D+2}, v{D+2}, v{D+3}\nv_cvt_pk_bf16_f32 v{36+u}, v{D}, v{D+2}')
    A('v_mfma_f32_16x16x16_bf16 v[20:23], v[36:37], v[32:33], 0\nv_mfma_f32_16x16x16_bf16 v[24:27], v[36:37], v[34:35], 0')
    k1=A.lab('K')
    A(f'''s_cmp_lg_u32 s{sX}, 1
    s_cbranch_scc1 {k1}
    s_lshr_b32 s{sT2}, s{sKVO}, 2
    s_lshl_b32 s{sT}, s{sWV}, 9
    s_add_u32 s{sT2}, s{sT2}, s{sT}
    s_add_u32 s{sT2}, s{sT2}, {VM}
    v_lshrrev_b32 v43, 1, v0
    buffer_store_dwordx2 v[36:37], v43, s[{SWS}:{SWS+3}], s{sT2} offen sc1
    {k1}:
    s_cmp_eq_u32 s{sS}, 63
    s_cbranch_scc1 RECEND''')
    for u in range(2):
        for i in range(4): A(f'v_add_f32 v{12+4*u+i}, v{12+4*u+i}, v{20+4*u+i}')
    for u in range(2):
        for i in range(4): A(f'v_mul_f32 v{12+4*u+i}, v{12+4*u+i}, v42')
    for u in range(2):
        A(f'v_cvt_pk_bf16_f32 v{44+2*u}, v{12+4*u}, v{13+4*u}\nv_cvt_pk_bf16_f32 v{45+2*u}, v{14+4*u}, v{15+4*u}')
    A('s_mov_b32 exec_lo, 0x33333333\ns_mov_b32 exec_hi, 0x33333333')
    A('ds_write_b64 v4, v[44:45]\nds_write_b64 v4, v[46:47] offset:1024\ns_mov_b64 exec, -1')
    for r in range(8,28): A(f'v_mov_b32 v{r}, 0')
    dq.all(); A('s_barrier')
    TS(A,6)
    A(f'ds_read_b128 v[44:47], v5 offset:{OI-MI}\nds_read_b128 v[48:51], v5 offset:{OI-MI+1024}'); dq.add('O0'); dq.add('O1')
    A(f's_add_u32 s{sKVO}, s{sKVO}, {32*8192}')
    kv_dma(sKVO)
    for ks in range(2):
        dq.wait(f'O{ks}')
        for t in range(5): A(f'{SMF} v[{8+4*t}:{8+4*t+3}], v[{44+4*ks}:{47+4*ks}], {slotreg(P_wo(ks,t))}, v1')
    A(f'v_lshrrev_b32 v43, 1, v0\nv_mov_b32 v42, -2')
    for t in range(5):
        d=8+4*t
        A(f'v_add_f32 v{d}, v{d}, v{d+1}\nv_add_f32 v{d+1}, v{d+2}, v{d+3}\nv_and_or_b32 v{d}, v{d}, v42, s{sTAG}\nv_and_or_b32 v{d+1}, v{d+1}, v42, s{sTAG}')
    so=[(sPW0,0),(sPW0,2048),(sPW1,0),(sPW1,2048),(sPW2,0)]
    def pst(m): return '\n'.join(f'buffer_store_dwordx2 v[{8+4*t}:{9+4*t}], v43, s[{SWS}:{SWS+3}], s{so[t][0]} offen offset:{so[t][1]}{m}' for t in range(5))
    modal(A,pst(''),pst(' sc1'))
    TS(A,7)
    A('s_waitcnt vmcnt(0)')
    TS(A,8)
    c1=A.lab('C')
    A(f'''s_and_b32 s{sT}, s{sS}, 3
    s_cmp_lg_u32 s{sT}, 0
    s_cbranch_scc1 {c1}
    s_cmp_ge_u32 s{sS}, 60
    s_cbranch_scc1 {c1}
    s_lshl_b32 s{sT2}, s{sWV}, 8
    s_add_u32 s{sT2}, s{sT2}, {SPARE+1024}
    v_mov_b32 v68, s{sT2}
    ds_read_b32 v68, v68
    s_waitcnt lgkmcnt(0)
    v_readfirstlane_b32 s{sT2}, v68
    s_cmp_ge_u32 s{sT2}, 64
    s_cbranch_scc1 {c1}
    s_lshr_b32 s{sT}, s{sS}, 2
    s_add_u32 s{sT}, s{sT}, 1
    s_lshl_b32 s{sT}, s{sT}, 7
    s_add_u32 s{sT}, s{sT}, {C_KV0}''')
    if 'norecwait' not in opts: poll_ge(A,f's{sT}',64,15,vt=68)
    A(f'{c1}:')
    nr=A.lab('NR')
    A(f's_cmp_ge_u32 s{sID}, 20\ns_cbranch_scc1 {nr}')
    A(f'''v_lshrrev_b32 v8, 9, v0
    v_mul_u32_u24 v8, 10240, v8
    v_and_b32 v9, 0x1f0, v0
    v_add_u32 v8, v8, v9
    s_add_u32 s{sT}, s{sPR}, 20480
    s_add_u32 s{sT2}, s{sPR}, 40960
    s_add_u32 s{sT3}, s{sPR}, 61440
    s_sub_u32 s{sTG}, 0, s{sTAG}''')
    Lp=A.lab('RP'); D=A.lab('RD')
    A(f'{Lp}:')
    for i,so_ in enumerate((sPR,sT,sT2,sT3)): A(f'buffer_load_dwordx4 v[{28+4*i}:{31+4*i}], v8, s[{SWS}:{SWS+3}], s{so_} offen sc1')
    A('s_waitcnt vmcnt(0)')
    for i in range(8): A(f'v_bitop3_b32 v{12+i}, v{28+2*i}, v{29+2*i}, s{sTAG} bitop3:0x7e')
    A('v_or3_b32 v12, v12, v13, v14\nv_or3_b32 v15, v15, v16, v17\nv_or3_b32 v12, v12, v18, v19\nv_or_b32 v12, v12, v15\nv_and_b32 v12, 1, v12\nv_cmp_ne_u32 vcc, 0, v12')
    A(f's_cbranch_vccz {D}\ns_add_u32 s{sCNT}, s{sCNT}, 1\ns_cmp_lt_u32 s{sCNT}, {SPIN}\ns_cbranch_scc1 {Lp}')
    abort(A,16)
    A(f'{D}:')
    TS(A,9)
    for k in range(4): A(f'v_add_f32 v{28+k}, v{28+k}, v{32+k}\nv_add_f32 v{36+k}, v{36+k}, v{40+k}')
    for k in range(4): A(f'v_add_f32 v{28+k}, v{28+k}, v{36+k}')
    A('v_permlane32_swap_b32 v28, v29\nv_permlane32_swap_b32 v30, v31\nv_add_f32 v28, v28, v29\nv_add_f32 v29, v30, v31')
    A(f'v_lshrrev_b32 v9, 1, v0\ns_lshl_b32 s{sT}, s{sWV}, 9\ns_add_u32 s{sT}, s{sT}, {RED}\nv_add_u32 v10, s{sT}, v9\nds_write_b64 v10, v[28:29]\ns_waitcnt lgkmcnt(0)\ns_barrier')
    A(f's_cmp_lg_u32 s{sWV}, 0\ns_cbranch_scc1 {nr}')
    A(f'v_add_u32 v10, {RED}, v9')
    for w in range(4): A(f'ds_read_b64 v[{28+2*w}:{29+2*w}], v10 offset:{512*w}')
    A('''v_bfe_u32 v11, v0, 7, 2
    v_lshlrev_b32 v11, 6, v11
    v_lshrrev_b32 v12, 9, v0
    v_lshl_add_u32 v11, v12, 5, v11
    v_bfe_u32 v12, v0, 6, 1
    v_lshl_add_u32 v11, v12, 4, v11''')
    A(f's_add_u32 s{sT}, s{sBUFN}, s{sSL}\ns_add_u32 s{sT2}, s{sT}, 10240\ns_waitcnt lgkmcnt(0)')
    A('v_add_f32 v28, v28, v30\nv_add_f32 v29, v29, v31\nv_add_f32 v32, v32, v34\nv_add_f32 v33, v33, v35\nv_add_f32 v28, v28, v32\nv_add_f32 v29, v29, v33\nv_cvt_pk_bf16_f32 v28, v28, v29\nv_min_u32 v28, -2, v28')
    for k in range(4): A(f'v_mov_b32_dpp v{32+k}, v28 quad_perm:[{k},{k},{k},{k}] row_mask:0xf bank_mask:0xf')
    A('s_mov_b32 exec_lo, 0x11111111\ns_mov_b32 exec_hi, 0x11111111')
    modal(A,f'buffer_store_dwordx4 v[32:35], v11, s[{SWS}:{SWS+3}], s{sT} offen',f'buffer_store_dwordx4 v[32:35], v11, s[{SWS}:{SWS+3}], s{sT} offen sc1')
    A(f'buffer_store_dwordx4 v[32:35], v11, s[{SWS}:{SWS+3}], s{sT2} offen sc1\ns_mov_b64 exec, -1')
    A(f'{nr}:')
    TS(A,10)
    A(f'''s_mov_b32 s{sT}, s{sBUF}
    s_mov_b32 s{sBUF}, s{sBUFN}
    s_mov_b32 s{sBUFN}, s{sBUFR}
    s_mov_b32 s{sBUFR}, s{sT}
    s_xor_b32 s{sTAG}, s{sTAG}, 1
    s_add_u32 s{sS}, s{sS}, 1
    s_branch STEP''')
    A(f'''RECEND:
    s_waitcnt vmcnt(0)
    s_add_u32 s{sT}, s{sFM}, {63*1024}
    v_mov_b32 v68, 1
    v_mov_b32 v69, 0
    s_mov_b64 exec, 1
    buffer_store_dword v68, v69, s[{SWS}:{SWS+3}], s{sT} offen sc1
    s_mov_b64 exec, -1''')
    if TSON:
        l=A.lab('T')
        A(f's_or_b32 s28, s{sID}, s{sX}\ns_or_b32 s28, s28, s{sWV}\ns_cmp_lg_u32 s28, 0\ns_cbranch_scc1 {l}\ns_waitcnt lgkmcnt(0)')
        srd(A,SC,96,256)
        for k in range(11): A(f's_sub_u32 s28, s{72+2*k}, s72\nv_mov_b32 v8, s28\nv_mov_b32 v9, {128+4*k}\nbuffer_store_dword v8, v9, s[{SC}:{SC+3}], 0 offen')
        A(f'v_mov_b32 v8, s{sCNT}\nv_mov_b32 v9, {128+44}\nbuffer_store_dword v8, v9, s[{SC}:{SC+3}], 0 offen')
        A(f'{l}:')
    A('s_waitcnt vmcnt(0)\ns_endpgm')
```

```python
from asmlib import *
from gen1 import *
import struct
def f32(x): return '0x%08x'%struct.unpack('<I',struct.pack('<f',x))[0]
sS=50; sH=51; sT=52; sT2=53; sT3=54; sB=55; sSC=56; sCNT=57; sFL=58; sPAR=59; sCS=60
MK=70
def wave_signal(A,soff,vt=2):
    A(f's_waitcnt vmcnt(0)\nv_mov_b32 v{vt}, 1\nv_mov_b32 v{vt+1}, 0\ns_mov_b64 exec, 1\nbuffer_atomic_add v{vt}, v{vt+1}, s[{SWS}:{SWS+3}], s{soff} offen\ns_mov_b64 exec, -1')
def allred(A,r,t,op):
    A(f'v_mov_b32 v{t}, v{r}\nv_permlane16_swap_b32 v{r}, v{t}\n{op} v{r}, v{r}, v{t}\nv_mov_b32 v{t}, v{r}\nv_permlane32_swap_b32 v{r}, v{t}\n{op} v{r}, v{r}, v{t}')
def attn(A,opts):
    Q=8;K=40;V=72;KMr=104;VMr=120;S00,S01,S11,SM0,SM1=128,132,136,140,144;O=160;NEG=148
    A(f'''ATT:
    s_lshr_b32 s{sS}, s{sID}, 3
    s_and_b32 s{sH}, s{sID}, 7
    s_lshl_b32 s{sH}, s{sH}, 2
    s_add_u32 s{sH}, s{sH}, s{sWV}
    v_lshlrev_b32 v1, 4, v0
    v_and_b32 v2, 15, v0
    v_lshrrev_b32 v3, 4, v0
    v_lshlrev_b32 v3, 2, v3
    s_mov_b32 s{sSC}, 0x3e0293ee
    v_mov_b32 v{NEG}, {f32(-1e9*128**0.5)}''')
    for i in range(4): A(f'v_add_u32 v4, {i}, v3\nv_cmp_le_u32 s[{MK+2*i}:{MK+2*i+1}], v4, v2')
    A('ATL:')
    A(f's_lshr_b32 s{sT}, s{sS}, 2\ns_lshl_b32 s{sT}, s{sT}, 7\ns_add_u32 s{sT2}, s{sT}, {C_Q0}\ns_add_u32 s{sT}, s{sT}, {C_KV0}')
    poll_ge(A,f's{sT2}',32,20); poll_ge(A,f's{sT}',64,21)
    A(f's_lshl_b32 s{sB}, s{sS}, 5\ns_add_u32 s{sB}, s{sB}, s{sH}\ns_lshl_b32 s{sT3}, s{sB}, 13')
    for base,r in ((QF,Q),(KF,K),(VF,V)):
        A(f's_add_u32 s{sT}, s{sT3}, {base}\ns_add_u32 s{sT2}, s{sT}, 4096')
        for i in range(8): A(f'buffer_load_dwordx4 v[{r+4*i}:{r+4*i+3}], v1, s[{SWS}:{SWS+3}], s{sT if i<4 else sT2} offen offset:{1024*(i&3)} sc1')
    A('s_waitcnt vmcnt(8)')
    fr=lambda b,j,t: v(b+4*(2*j+t),4)
    for j in range(4):
        for D,kt,qt in ((S00,0,0),(S01,0,1),(S11,1,1)):
            A(f'v_mfma_f32_16x16x32_bf16 v[{D}:{D+3}], {fr(K,j,kt)}, {fr(Q,j,qt)}, '+('0' if j==0 else f'v[{D}:{D+3}]'))
    L=A.lab('AF'); D=A.lab('AD')
    A(f'''s_lshl_b32 s{sFL}, s{sB}, 5
    s_add_u32 s{sFL}, s{sFL}, {F_M}
    v_and_b32 v2, 7, v0
    v_lshlrev_b32 v2, 2, v2
    s_mov_b32 s{sCNT}, 0
    {L}:
    buffer_load_dword v3, v2, s[{SWS}:{SWS+3}], s{sFL} offen sc1
    s_waitcnt vmcnt(0)
    v_cmp_ne_u32 vcc, 1, v3
    s_cbranch_vccz {D}
    s_add_u32 s{sCNT}, s{sCNT}, 1
    s_cmp_lt_u32 s{sCNT}, {SPIN}
    s_cbranch_scc1 {L}''')
    abort(A,22)
    A(f'''{D}:
    s_lshl_b32 s{sT}, s{sB}, 12
    s_add_u32 s{sT}, s{sT}, {KM}
    s_lshl_b32 s{sT2}, s{sB}, 11
    s_add_u32 s{sT2}, s{sT2}, {VM}
    v_lshlrev_b32 v2, 3, v0''')
    for j in range(4): A(f'buffer_load_dwordx4 v[{KMr+4*j}:{KMr+4*j+3}], v1, s[{SWS}:{SWS+3}], s{sT} offen offset:{1024*j} sc1')
    for w in range(4): A(f'buffer_load_dwordx2 v[{VMr+2*w}:{VMr+2*w+1}], v2, s[{SWS}:{SWS+3}], s{sT2} offen offset:{512*w} sc1')
    for i in range(4):
        A(f'v_cndmask_b32 v{S00+i}, v{NEG}, v{S00+i}, s[{MK+2*i}:{MK+2*i+1}]\nv_cndmask_b32 v{S11+i}, v{NEG}, v{S11+i}, s[{MK+2*i}:{MK+2*i+1}]')
    for j in range(4):
        A(f's_waitcnt vmcnt({7-j})')
        for D_,qt in ((SM0,0),(SM1,1)):
            A(f'v_mfma_f32_16x16x32_bf16 v[{D_}:{D_+3}], v[{KMr+4*j}:{KMr+4*j+3}], {fr(Q,j,qt)}, '+('0' if j==0 else f'v[{D_}:{D_+3}]'))
    m0,m1,t0,t1=150,151,152,153
    A(f'v_max3_f32 v{m0}, v{S00}, v{S00+1}, v{S00+2}\nv_max3_f32 v{m1}, v{S01}, v{S01+1}, v{S01+2}\nv_max3_f32 v{t0}, v{S01+3}, v{S11}, v{S11+1}\nv_max3_f32 v{m1}, v{m1}, v{S11+2}, v{S11+3}')
    A(f'v_max_f32 v{m0}, v{m0}, v{S00+3}\nv_max_f32 v{m1}, v{m1}, v{t0}')
    A(f'v_max3_f32 v{m0}, v{m0}, v{SM0}, v{SM0+1}\nv_max3_f32 v{m1}, v{m1}, v{SM1}, v{SM1+1}')
    allred(A,m0,t0,'v_max_f32'); allred(A,m1,t1,'v_max_f32')
    A(f'v_mul_f32 v{m0}, s{sSC}, v{m0}\nv_mul_f32 v{m1}, s{sSC}, v{m1}')
    r0=[S00+i for i in range(4)]+[SM0,SM0+1]; r1=[S01+i for i in range(4)]+[S11+i for i in range(4)]+[SM1,SM1+1]
    for r in r0: A(f'v_fma_f32 v{r}, v{r}, s{sSC}, -v{m0}')
    for r in r1: A(f'v_fma_f32 v{r}, v{r}, s{sSC}, -v{m1}')
    for r in r0+r1: A(f'v_exp_f32 v{r}, v{r}')
    def ssum(d,rs):
        A(f'v_add_f32 v{d}, v{rs[0]}, v{rs[1]}')
        for r in rs[2:]: A(f'v_add_f32 v{d}, v{d}, v{r}')
    ssum(m0,r0); ssum(m1,r1)
    P0,P1,PM0,PM1=224,228,232,236
    A(f'''v_cvt_pk_bf16_f32 v{P0}, v{S00}, v{S00+1}
    v_cvt_pk_bf16_f32 v{P0+1}, v{S00+2}, v{S00+3}
    v_mov_b32 v{P0+2}, 0
    v_mov_b32 v{P0+3}, 0
    v_cvt_pk_bf16_f32 v{P1}, v{S01}, v{S01+1}
    v_cvt_pk_bf16_f32 v{P1+1}, v{S01+2}, v{S01+3}
    v_cvt_pk_bf16_f32 v{P1+2}, v{S11}, v{S11+1}
    v_cvt_pk_bf16_f32 v{P1+3}, v{S11+2}, v{S11+3}
    v_cvt_pk_bf16_f32 v{PM0}, v{SM0}, v{SM0+1}
    v_mov_b32 v{PM0+1}, 0
    v_mov_b32 v{PM0+2}, 0
    v_mov_b32 v{PM0+3}, v{PM0}
    v_cvt_pk_bf16_f32 v{PM1}, v{SM1}, v{SM1+1}
    v_mov_b32 v{PM1+1}, 0
    v_mov_b32 v{PM1+2}, 0
    v_mov_b32 v{PM1+3}, v{PM1}''')
    for et in range(8):
        for qt,P in ((0,P0),(1,P1)):
            d=O+4*(2*et+qt); A(f'v_mfma_f32_16x16x32_bf16 v[{d}:{d+3}], v[{V+4*et}:{V+4*et+3}], v[{P}:{P+3}], 0')
    allred(A,m0,t0,'v_add_f32'); allred(A,m1,t1,'v_add_f32')
    A(f'v_rcp_f32 v{m0}, v{m0}\nv_rcp_f32 v{m1}, v{m1}\ns_waitcnt vmcnt(0)')
    for et in range(8):
        u,w=et>>2,et&3
        for qt,P in ((0,PM0),(1,PM1)):
            d=O+4*(2*et+qt); A(f'v_mfma_f32_16x16x16_bf16 v[{d}:{d+3}], v[{VMr+2*w}:{VMr+2*w+1}], v[{P+2*u}:{P+2*u+1}], v[{d}:{d+3}]')
    A(f'''s_lshl_b32 s{sT}, s{sS}, 18
    s_lshl_b32 s{sT2}, s{sH}, 13
    s_add_u32 s{sT}, s{sT}, s{sT2}
    s_add_u32 s{sT}, s{sT}, {OF}
    s_add_u32 s{sT2}, s{sT}, 4096''')
    for et in range(8):
        d=O+8*et; R=8+4*et
        for i in range(4): A(f'v_mul_f32 v{d+i}, v{d+i}, v{m0}\nv_mul_f32 v{d+4+i}, v{d+4+i}, v{m1}')
        A(f'v_cvt_pk_bf16_f32 v{R}, v{d}, v{d+1}\nv_cvt_pk_bf16_f32 v{R+1}, v{d+2}, v{d+3}\nv_cvt_pk_bf16_f32 v{R+2}, v{d+4}, v{d+5}\nv_cvt_pk_bf16_f32 v{R+3}, v{d+6}, v{d+7}')
        A(f'v_permlane16_swap_b32 v{R}, v{R+2}\nv_permlane16_swap_b32 v{R+1}, v{R+3}')
        A(f'buffer_store_dwordx4 v[{R}:{R+3}], v1, s[{SWS}:{SWS+3}], s{sT if et<4 else sT2} offen offset:{1024*(et&3)} sc1')
    A(f's_lshl_b32 s{sT}, s{sS}, 7\ns_add_u32 s{sT}, s{sT}, {C_O0}')
    wave_signal(A,sT)
    A(f's_add_u32 s{sS}, s{sS}, 8\ns_cmp_lt_u32 s{sS}, 64\ns_cbranch_scc1 ATL\ns_waitcnt vmcnt(0)\ns_endpgm')
def wo(A,opts):
    RING=16; NR=56; ACC=240
    A(f'''WO:
    s_sub_u32 s28, s{sID}, 64
    s_mul_i32 s{sS}, s28, 3277
    s_lshr_b32 s{sS}, s{sS}, 16
    s_mul_i32 s29, s{sS}, 20
    s_sub_u32 s{sCS}, s28, s29''')
    srd(A,SA,40,5242880); srd(A,SB,0,2621440); srd(A,SD,88,2621440)
    A(f'''v_lshrrev_b32 v2, 2, v0
    v_mul_u32_u24 v2, 1280, v2
    v_and_b32 v3, 3, v0
    v_lshl_add_u32 v2, v3, 4, v2
    s_mul_i32 s{sT}, s{sWV}, {1024*1280}
    s_lshl_b32 s{sT2}, s{sCS}, 6
    s_add_u32 s{sT}, s{sT}, s{sT2}
    s_lshl_b32 s{sT2}, s{sWV}, 15
    v_lshrrev_b32 v4, 5, v0
    v_lshlrev_b32 v4, 3, v4
    v_bfe_u32 v5, v0, 2, 2
    v_add_u32 v4, v4, v5
    v_lshlrev_b32 v4, 6, v4
    v_bfe_u32 v5, v0, 4, 1
    v_lshl_add_u32 v4, v5, 5, v4
    v_lshl_add_u32 v4, v3, 3, v4
    v_add_u32 v4, s{sT2}, v4''')
    for half in range(2):
        A(f's_mov_b32 m0, s{sT2}')
        for i in range(32):
            A(f'buffer_load_dwordx4 v2, s[{SA}:{SA+3}], s{sT} offen lds\ns_add_u32 s{sT}, s{sT}, {16*1280}')
            if i<31: A('s_add_u32 m0, m0, 1024')
        A('s_waitcnt vmcnt(0)')
        for i in range(32):
            for t in range(2):
                r=4*(32*half+i)+2*t
                A(f'ds_read_b64_tr_b16 a[{r}:{r+1}], v4 offset:{1024*i+256*t}')
            if i%4==3: A('s_waitcnt lgkmcnt(4)')
        A('s_waitcnt lgkmcnt(0)')
    A(f'''s_barrier
    v_lshlrev_b32 v1, 4, v0
    v_and_b32 v2, 31, v0
    v_mul_u32_u24 v2, 1280, v2
    v_lshrrev_b32 v3, 5, v0
    v_lshl_add_u32 v2, v3, 3, v2
    s_lshl_b32 s{sT}, s{sWV}, 4
    s_lshl_b32 s{sT2}, s{sCS}, 6
    s_add_u32 s{sT}, s{sT}, s{sT2}
    v_add_u32 v8, s{sT}, v2
    s_mov_b32 s{sPAR}, 0''')
    A('WOL:')
    A(f's_lshr_b32 s{sT}, s{sS}, 2\ns_lshl_b32 s{sT}, s{sT}, 7\ns_add_u32 s{sT}, s{sT}, {C_G0}')
    poll_ge(A,f's{sT}',5,23)
    A(f's_mul_i32 s{sB}, s{sS}, {32*1280}\ns_add_u32 s{sT}, s{sB}, {GB}')
    A(f'buffer_load_dwordx2 v[4:5], v8, s[{SB}:{SB+3}], s{sB} offen\nbuffer_load_dwordx2 v[6:7], v8, s[{SWS}:{SWS+3}], s{sT} offen sc1')
    A(f's_lshl_b32 s{sT}, s{sS}, 7\ns_add_u32 s{sT}, s{sT}, {C_O0}')
    poll_ge(A,f's{sT}',32,24)
    A(f's_lshl_b32 s{sT}, s{sS}, 18\ns_lshl_b32 s{sT2}, s{sWV}, 16\ns_add_u32 s{sT}, s{sT}, s{sT2}\ns_add_u32 s{sT}, s{sT}, {OF}')
    def ld(i):
        sl=RING+4*(i%NR)
        A(f'buffer_load_dwordx4 v[{sl}:{sl+3}], v1, s[{SWS}:{SWS+3}], s{sT} offen offset:{1024*(i&3)} sc1')
        if i&3==3: A(f's_add_u32 s{sT}, s{sT}, 4096')
    for i in range(NR): ld(i)
    for i in range(64):
        A(f's_waitcnt vmcnt({NR-1 if i<64-NR else 63-i})')
        sl=RING+4*(i%NR)
        A(f'v_mfma_f32_32x32x16_bf16 v[{ACC}:{ACC+15}], a[{4*i}:{4*i+3}], v[{sl}:{sl+3}], '+('0' if i==0 else f'v[{ACC}:{ACC+15}]'))
        if i<64-NR: ld(NR+i)
    A(f's_lshl_b32 s{sT}, s{sWV}, 12\ns_add_u32 s{sT}, s{sT}, s{sPAR}\nv_add_u32 v9, s{sT}, v1')
    for q in range(4): A(f'ds_write_b128 v9, v[{ACC+4*q}:{ACC+4*q+3}] offset:{1024*q}')
    A(f's_lshl_b32 s{sT}, s{sWV}, 10\ns_add_u32 s{sT}, s{sT}, s{sPAR}\nv_add_u32 v9, s{sT}, v1\ns_waitcnt lgkmcnt(0)\ns_barrier')
    for w in range(4): A(f'ds_read_b128 v[{16+4*w}:{19+4*w}], v9 offset:{4096*w}')
    unpack(A,32,4,2); unpack(A,36,6,2)
    A('s_waitcnt lgkmcnt(0)')
    for i in range(4): A(f'v_add_f32 v{16+i}, v{16+i}, v{20+i}\nv_add_f32 v{24+i}, v{24+i}, v{28+i}')
    for i in range(4): A(f'v_add_f32 v{16+i}, v{16+i}, v{24+i}')
    A('v_cvt_pk_bf16_f32 v20, v16, v17\nv_cvt_pk_bf16_f32 v21, v18, v19'); unpack(A,16,20,2)
    for i in range(4): A(f'v_mul_f32 v{16+i}, v{16+i}, v{36+i}')
    A('v_cvt_pk_bf16_f32 v20, v16, v17\nv_cvt_pk_bf16_f32 v21, v18, v19'); unpack(A,16,20,2)
    for i in range(4): A(f'v_add_f32 v{16+i}, v{16+i}, v{32+i}')
    A('v_cvt_pk_bf16_f32 v20, v16, v17\nv_cvt_pk_bf16_f32 v21, v18, v19')
    A(f'buffer_store_dwordx2 v[20:21], v8, s[{SD}:{SD+3}], s{sB} offen')
    A(f's_xor_b32 s{sPAR}, s{sPAR}, 16384\ns_add_u32 s{sS}, s{sS}, 6\ns_cmp_lt_u32 s{sS}, 64\ns_cbranch_scc1 WOL\ns_waitcnt vmcnt(0)\ns_endpgm')
def worker3(A,opts):
    A(f's_cmp_lt_u32 s{sID}, 64\ns_cbranch_scc1 ATT\ns_cmp_lt_u32 s{sID}, 184\ns_cbranch_scc1 WO\ns_endpgm')
    attn(A,opts); wo(A,opts)
```

```python
import sys, importlib
from asmlib import *
import gen1
from gen1 import *
def build(opts):
    A=Asm()
    gen1.TR='tr' in opts or 'trd' in opts; gen1.TRD='trd' in opts
    prologue(A)
    A('WORKER:\nv_and_b32 v0, 63, v0')
    if 'batch' in opts:
        ln_stage(A); worker_batch(A)
    if 'w3' in opts:
        import gen3; gen3.worker3(A,opts)
    A('s_endpgm')
    A('REC:\nv_and_b32 v0, 63, v0')
    if 'rec' in opts:
        import gen2; gen2.rec(A,opts)
    A('KEND:\ns_endpgm')
    body=hazard_pass(A.L)
    hdr=open('cdna_kernels/%s.s.ref'%KN).read().split('; @launch')[0]
    hdr=hdr.rstrip('\n').rsplit('\n',2)[0]
    out=hdr+'\n; Override launch geometry below.\n; @launch grid=(256,1,1) block=(256,1,1) lds=163840\n'
    out+='.amdgcn_target "amdgcn-amd-amdhsa--gfx950"\n.text\n.globl %s_kernel\n.p2align 8\n.type %s_kernel,@function\n%s_kernel:\n'%(KN,KN,KN)
    out+='\n'.join(body)+'\n'
    out+='''.section .rodata,"a"
.p2align 6
.amdhsa_kernel %s_kernel
  .amdhsa_next_free_vgpr 512
  .amdhsa_next_free_sgpr 102
  .amdhsa_accum_offset 256
  .amdhsa_group_segment_fixed_size 0
  .amdhsa_kernarg_size 112
  .amdhsa_user_sgpr_count 2
  .amdhsa_user_sgpr_kernarg_segment_ptr 1
  .amdhsa_system_sgpr_workgroup_id_x 1
.end_amdhsa_kernel
'''%KN
    return out
if __name__=='__main__':
    opts=sys.argv[2:] ; o=build(opts); open(sys.argv[1],'w').write(o); print(len(o),'bytes',o.count('\n'),'lines')
```

```python
import re
TRANS=('v_exp_f32','v_log_f32','v_rcp_f32','v_rsq_f32','v_sqrt_f32','v_sin_f32','v_cos_f32')
def regs(tok):
    tok=tok.strip()
    m=re.fullmatch(r'([vas])(\d+)',tok)
    if m:
        b={'v':0,'a':256,'s':1000}[m.group(1)]; return [b+int(m.group(2))]
    m=re.fullmatch(r'([vas])\[(\d+):(\d+)\]',tok)
    if m:
        b={'v':0,'a':256,'s':1000}[m.group(1)]; return [b+i for i in range(int(m.group(2)),int(m.group(3))+1)]
    if tok=='vcc': return [1106,1107]
    if tok=='exec': return [1126,1127]
    if tok in('exec_lo',): return [1126]
    if tok in('exec_hi',): return [1127]
    if tok=='m0': return [1124]
    return []
class I:
    def __init__(s,text):
        s.text=text; t=text.split(';')[0].strip()
        s.label=None; s.op=None; s.w=set(); s.r=set(); s.cls='none'; s.states=0
        if not t or t.startswith('.'): return
        if t.endswith(':'): s.label=t[:-1]; return
        p=t.split(None,1); op=p[0]; s.op=op
        rest=p[1] if len(p)>1 else ''
        ops=[x.strip() for x in re.split(r',(?![^\[]*\])',rest)] if rest else []
        if ops:
            last=ops[-1].split()
            s.mods=last[1:]; ops[-1]=last[0] if last else ''
        else: s.mods=[]
        s.ops=ops; s.states=1
        R=lambda k:[x for o in k for x in regs(o)]
        if op=='s_nop': s.cls='nop'; s.states=int(ops[0],0)+1; return
        s.passes=8 if '32x32' in op else 4
        if op.startswith('v_smfmac'):
            s.cls='mfma'; s.w=set(regs(ops[0])); s.A=set(regs(ops[1])); s.B=set(regs(ops[2]))|set(regs(ops[3])); s.C=set(s.w); s.r=s.A|s.B|s.C; s.shape=op
        elif op.startswith('v_mfma'):
            s.cls='mfma'; s.w=set(regs(ops[0])); s.A=set(regs(ops[1])); s.B=set(regs(ops[2])); s.C=set(regs(ops[3])); s.r=s.A|s.B|s.C; s.shape=op
        elif op.startswith('v_'):
            s.cls='valu'
            base=re.sub(r'_(e32|e64|dpp|sdwa)$','',op)
            s.trans=base in TRANS
            s.dpp=op.endswith('_dpp') or 'permlane' in op
            if 'permlane' in op: s.w=set(R(ops[:2])); s.r=set(s.w)
            elif base.startswith('v_cmpx'): s.w={1126,1127}; s.r=set(R(ops))
            elif base.startswith('v_cmp'): s.w=set(regs(ops[0])); s.r=set(R(ops[1:]))
            else:
                s.w=set(regs(ops[0])); s.r=set(R(ops[1:]))
                if base.startswith(('v_fmac','v_mac','v_writelane')) or s.dpp: s.r|=s.w
                if base=='v_cndmask_b32' and len(ops)==3: s.r|={1106,1107}
            s.rl=base in('v_readlane_b32','v_readfirstlane_b32','v_writelane_b32')
        elif op.startswith(('buffer_','global_')):
            s.cls='vmem'; lds='lds' in s.mods
            if op.startswith(('buffer_wbl2','buffer_inv')): return
            if 'load' in op:
                if lds: s.r=set(R(ops))|{1124}; s.lds=True
                else: s.w=set(regs(ops[0])); s.r=set(R(ops[1:]))
            elif 'store' in op:
                s.r=set(R(ops)); s.data=set(regs(ops[0])); s.wide=('x4' in op or 'x3' in op)
            else:
                s.r=set(R(ops));
                if 'sc0' in s.mods: s.w=set(regs(ops[0]))
        elif op.startswith('ds_'):
            s.cls='ds'
            if 'read' in op or 'permute' in op or 'swizzle' in op: s.w=set(regs(ops[0])); s.r=set(R(ops[1:]))
            else: s.r=set(R(ops))
        elif op.startswith('s_'):
            s.cls='salu'
            if op.startswith(('s_cmp','s_bitcmp','s_cbranch','s_branch','s_waitcnt','s_barrier','s_endpgm','s_sleep','s_setprio')): s.r=set(R(ops))
            elif op.startswith('s_load') : s.w=set(regs(ops[0])); s.r=set(R(ops[1:]))
            else:
                s.w=set(regs(ops[0])); s.r=set(R(ops[1:]))
                if 'saveexec' in op: s.w|={1126,1127}
            if op.startswith(('s_cbranch','s_branch')): s.target=ops[0]
        else: raise Exception('unknown op '+text)
def need(prev,cur):
    n=0
    isv=lambda x:x<512
    if prev.cls=='valu':
        wv={x for x in prev.w if isv(x)}; ws={x for x in prev.w if not isv(x)}
        if cur.cls=='mfma' and wv&cur.r: n=max(n,2)
        if cur.cls=='mfma' and ws&{1126,1127}: n=max(n,4)
        if cur.cls=='valu':
            if cur.dpp and wv&cur.r: n=max(n,2)
            if cur.dpp and ws&{1126,1127}: n=max(n,5)
            if cur.rl and wv&cur.r: n=max(n,1)
            if prev.trans and wv&cur.r: n=max(n,1)
            if ws&cur.r: n=max(n,4 if cur.rl else 2)
            if cur.rl and ws&{1126,1127}: n=max(n,4)
        if cur.cls=='vmem' and ws&cur.r: n=max(n,5)
        if cur.cls in('vmem','ds') and prev.trans and wv&cur.r: n=max(n,1)
    if prev.cls=='mfma':
        D=prev.w; big=prev.passes==8
        if cur.cls=='mfma':
            if D&(cur.A|cur.B): n=max(n,12 if big else 8)
            if D&cur.C:
                if not(D==cur.C and prev.shape==cur.shape): n=max(n,10 if big else 6)
            if D&cur.w and not D&cur.C: n=max(n,10 if big else 6)
        elif cur.cls in('valu','vmem','ds'):
            if D&(cur.r|cur.w): n=max(n,12 if big else 8)
        if cur.cls=='valu' and prev.C&cur.w: n=max(n,7 if big else 3)
    if prev.cls=='vmem' and getattr(prev,'wide',False):
        if cur.cls=='valu' and prev.data&cur.w: n=max(n,2)
        elif cur.cls in('ds','vmem','mfma') and prev.data&cur.w: n=max(n,1)
    if prev.cls=='salu' and 1124 in prev.w and cur.cls=='vmem' and getattr(cur,'lds',False): n=max(n,1)
    return n
WIN=22
def req(hist,cur):
    n=0
    for p,d in hist:
        k=need(p,cur)-d
        if k>n: n=k
    return n
def adv(hist,ins):
    st=ins.states
    if ins.cls=='mfma':
        ds=[(d,p) for p,d in hist if p.cls=='mfma']
        if ds:
            d,p=min(ds,key=lambda x:x[0])
            bump=max(0,p.passes-1-d)
            hist=[(q,e+bump) for q,e in hist]
    h=[(p,d+st) for p,d in hist if d+st<WIN]
    if ins.cls in('valu','mfma','vmem','salu'): h.append((ins,0))
    return h
def nops(n):
    out=[]
    while n>0:
        k=min(n,8); out.append(I('s_nop %d'%(k-1))); n-=k
    return out
def hazard_pass(lines):
    ins=[I(l) for l in lines]
    out=[]; hist=[]; pend={}; pos={}
    for x in ins:
        if x.label:
            hist=hist+pend.pop(x.label,[]); pos[x.label]=len(out); out.append(x); continue
        if x.op is None: out.append(x); continue
        n=req(hist,x)
        if hasattr(x,'target') and x.target in pos:
            h=adv(hist,x); extra=0; tot=0
            for y in out[pos[x.target]:]:
                if y.op is None: continue
                k=req(h,y)
                extra=max(extra,k); h=[(p,d+y.states) for p,d in h]; tot+=y.states
                if tot>WIN: break
            n=max(n,extra)
        for z in nops(n):
            out.append(z); hist=adv(hist,z)
        out.append(x); hist=adv(hist,x)
        if hasattr(x,'target') and x.target not in pos:
            pend.setdefault(x.target,[]); pend[x.target]+=hist
        if x.op in('s_branch','s_endpgm'): hist=[]
    return [z.text for z in out]
class Asm:
    def __init__(s): s.L=[]; s.n=0
    def __call__(s,t):
        for l in t.split('\n'):
            l=l.strip()
            if l: s.L.append(l)
    def lab(s,p='L'):
        s.n+=1; return '%s_%d'%(p,s.n)
def vr(a,n=1,p='v'):
    return '%s%d'%(p,a) if n==1 else '%s[%d:%d]'%(p,a,a+n-1)
def v(a,n=1): return vr(a,n,'v')
def a(x,n=1): return vr(x,n,'a')
def s(x,n=1): return vr(x,n,'s')
```

```python
from asmlib import *
KN='recurrent_scan__memory_aug_recurrent_mem_tr__swiglu_ffn__prompt'
C_LN=0
def C_KV(rb): return 128*(1+rb)
C_KV0=128; C_Q0=128*17; C_H0=128*33; C_G0=128*49; C_O0=128*65
F_M=0x8000
MEMB=0x20000; PBUF=0x40000; XN=0x100000; KF=0x400000; VF=0x1400000; QF=0x2400000
HB=0x3400000; GB=0x3B00000; KM=0x3E00000; VM=0x4600000; OF=0x4A00000
SPIN=1<<17
SWS=4; SA=8; SB=12; SC=16; SD=20
sWV=24; sID=25; sX=26; sMODE=27
def srd(A,base,arg,nbytes):
    A(f's_load_dwordx2 s[{base}:{base+1}], s[0:1], {arg}\ns_waitcnt lgkmcnt(0)\ns_mov_b32 s{base+2}, {nbytes}\ns_mov_b32 s{base+3}, 0x20000')
def abort(A,code):
    srd(A,SC,96,256)
    A(f'v_mov_b32 v2, {code}\nv_mov_b32 v3, 240\nbuffer_store_dword v2, v3, s[{SC}:{SC+3}], 0 offen sc1\ns_waitcnt vmcnt(0)\ns_endpgm')
def poll_ge(A,soff,target,code,vt=2,st=28):
    L=A.lab('PL'); D=A.lab('PD')
    if isinstance(soff,int): A(f'v_mov_b32 v{vt+1}, {soff}\ns_mov_b32 s{st}, 0'); soff=0
    else: A(f'v_mov_b32 v{vt+1}, 0\ns_mov_b32 s{st}, 0')
    A(f'{L}:')
    A(f'buffer_load_dword v{vt}, v{vt+1}, s[{SWS}:{SWS+3}], {soff} offen sc1\ns_waitcnt vmcnt(0)\nv_readfirstlane_b32 s{st+1}, v{vt}')
    A(f's_cmp_ge_u32 s{st+1}, {target}\ns_cbranch_scc1 {D}\ns_add_u32 s{st}, s{st}, 1\ns_cmp_lt_u32 s{st}, {SPIN}\ns_cbranch_scc1 {L}')
    abort(A,code)
    A(f'{D}:')
def signal(A,soff,vt=2):
    L=A.lab('SG')
    A(f's_waitcnt vmcnt(0)\ns_barrier\ns_cmp_lg_u32 s{sWV}, 0\ns_cbranch_scc1 {L}')
    if isinstance(soff,int): A(f'v_mov_b32 v{vt+1}, {soff}'); soff=0
    else: A(f'v_mov_b32 v{vt+1}, 0')
    A(f'v_mov_b32 v{vt}, 1\ns_mov_b64 exec, 1\nbuffer_atomic_add v{vt}, v{vt+1}, s[{SWS}:{SWS+3}], {soff} offen\ns_mov_b64 exec, -1')
    A(f'{L}:')
TR=False
def stamp(A,slot,vt=2,cond=None):
    if not TR: return
    L=A.lab('ST')
    for r,val in (cond or []): A(f's_cmp_lg_u32 s{r}, {val}\ns_cbranch_scc1 {L}')
    A(f's_load_dwordx2 s[92:93], s[0:1], 96\ns_memrealtime s[90:91]\ns_waitcnt lgkmcnt(0)\ns_mov_b32 s94, 256\ns_mov_b32 s95, 0x20000')
    A(f'v_mov_b32 v{vt}, s90\nv_mov_b32 v{vt+1}, {4*slot}\ns_mov_b64 s[96:97], exec\ns_mov_b64 exec, 1\nbuffer_atomic_umax v{vt}, v{vt+1}, s[92:95], 0 offen\ns_mov_b64 exec, s[96:97]\n{L}:')
def prologue(A):
    A(f'''s_cmp_ge_u32 s2, 256
    s_cbranch_scc1 KEND
    v_lshrrev_b32 v1, 6, v0
    s_nop 0
    v_readfirstlane_b32 s{sWV}, v1''')
    stamp(A,16,2,[(2,0),(sWV,0)])
    srd(A,SWS,104,0x10000000)
    srd(A,SC,96,256)
    srd(A,SA,8,10240)
    A(f'''v_mov_b32 v4, -1
    v_mov_b32 v5, -1
    v_mov_b32 v6, -1
    v_mov_b32 v7, -1
    v_mov_b32 v8, 0
    v_mov_b32 v9, 0
    v_mov_b32 v10, 0
    v_mov_b32 v11, 0
    v_lshlrev_b32 v2, 4, v0
    s_mul_i32 s28, s2, 2560
    s_add_u32 s28, s28, {PBUF}
    s_mul_i32 s29, s2, 384
    s_mul_i32 s30, s2, 160
    s_add_u32 s30, s30, {MEMB+20480}
    v_cmp_gt_u32 vcc, 160, v0
    s_and_saveexec_b64 s[32:33], vcc
    buffer_store_dwordx4 v[4:7], v2, s[{SWS}:{SWS+3}], s28 offen sc1
    v_cmp_gt_u32 vcc, 24, v0
    s_and_b64 exec, exec, vcc
    buffer_store_dwordx4 v[8:11], v2, s[{SWS}:{SWS+3}], s29 offen sc1
    v_cmp_gt_u32 vcc, 10, v0
    s_and_b64 exec, exec, vcc
    buffer_store_dwordx4 v[4:7], v2, s[{SWS}:{SWS+3}], s30 offen sc1
    s_mov_b64 exec, s[32:33]
    s_cmp_ge_u32 s2, 10
    s_cbranch_scc1 PRO_NOMEM
    s_cmp_lg_u32 s{sWV}, 0
    s_cbranch_scc1 PRO_NOMEM
    v_bfe_u32 v3, v0, 2, 2
    v_and_b32 v12, 1, v0
    v_lshl_add_u32 v12, v3, 1, v12
    v_mul_u32_u24 v12, 1280, v12
    v_bfe_u32 v3, v0, 1, 1
    v_lshl_add_u32 v12, v3, 4, v12
    v_lshrrev_b32 v3, 4, v0
    v_lshl_add_u32 v12, v3, 5, v12
    s_lshl_b32 s28, s2, 7
    buffer_load_dwordx4 v[12:15], v12, s[{SA}:{SA+3}], s28 offen
    s_lshl_b32 s28, s2, 10
    s_add_u32 s28, s28, {MEMB}
    s_add_u32 s29, s28, 10240
    s_waitcnt vmcnt(0)
    v_min_u32 v12, -2, v12
    v_min_u32 v13, -2, v13
    v_min_u32 v14, -2, v14
    v_min_u32 v15, -2, v15
    buffer_store_dwordx4 v[12:15], v2, s[{SWS}:{SWS+3}], s28 offen sc1
    buffer_store_dwordx4 v[12:15], v2, s[{SWS}:{SWS+3}], s29 offen sc1
    PRO_NOMEM:
    s_waitcnt vmcnt(0)
    s_barrier
    s_getreg_b32 s28, hwreg(HW_REG_XCC_ID,0,4)
    s_cmp_lg_u32 s{sWV}, 0
    s_cbranch_scc1 PRO_W
    v_mov_b32 v2, 1
    v_mov_b32 v3, s28
    v_lshlrev_b32 v3, 2, v3
    s_mov_b64 exec, 1
    buffer_atomic_add v2, v3, s[{SC}:{SC+3}], 0 offen sc0
    s_mov_b64 exec, -1
    s_waitcnt vmcnt(0)
    v_readfirstlane_b32 s29, v2
    v_and_b32 v3, 15, v0
    v_lshlrev_b32 v3, 2, v3
    s_mov_b32 s30, 0
    PRO_L:
    buffer_load_dword v4, v3, s[{SC}:{SC+3}], 0 offen sc1
    s_waitcnt vmcnt(0)
    v_add_u32_dpp v5, v4, v4 row_ror:8 row_mask:0xf bank_mask:0xf
    v_add_u32_dpp v5, v5, v5 row_ror:4 row_mask:0xf bank_mask:0xf
    v_add_u32_dpp v5, v5, v5 row_ror:2 row_mask:0xf bank_mask:0xf
    v_add_u32_dpp v5, v5, v5 row_ror:1 row_mask:0xf bank_mask:0xf
    v_readfirstlane_b32 s31, v5
    s_cmp_ge_u32 s31, 256
    s_cbranch_scc1 PRO_D
    s_add_u32 s30, s30, 1
    s_cmp_lt_u32 s30, {SPIN}
    s_cbranch_scc1 PRO_L''')
    abort(A,1)
    A(f'''PRO_D:
    v_mov_b32 v5, s29
    v_lshlrev_b32 v3, 2, v0
    ds_write_b32 v3, v4
    v_mov_b32 v3, 256
    ds_write_b32 v3, v5
    s_waitcnt lgkmcnt(0)
    PRO_W:
    s_barrier
    v_and_b32 v3, 15, v0
    v_lshlrev_b32 v3, 2, v3
    ds_read_b32 v4, v3
    v_mov_b32 v3, 256
    ds_read_b32 v5, v3
    s_waitcnt lgkmcnt(0)
    v_readfirstlane_b32 s29, v5''')
    for j in range(16): A(f'v_readlane_b32 s{32+j}, v4, {j}')
    A('s_barrier\ns_mov_b32 s30, -1\ns_mov_b32 s31, -1')
    for j in range(16):
        n=A.lab('R'); b=A.lab('R')
        A(f'''s_cmp_lt_u32 s{32+j}, 32
        s_cbranch_scc1 {n}
        s_cmp_eq_i32 s30, -1
        s_cbranch_scc0 {b}
        s_mov_b32 s30, {j}
        s_branch {n}
        {b}:
        s_cmp_eq_i32 s31, -1
        s_cbranch_scc0 {n}
        s_mov_b32 s31, {j}
        {n}:''')
    A(f'''s_mov_b32 s{sMODE}, 1
    s_cmp_eq_i32 s31, -1
    s_cbranch_scc0 PRO_F
    s_mov_b32 s{sMODE}, 0
    s_mov_b32 s30, -2
    s_mov_b32 s31, -2
    PRO_F:
    s_mov_b32 s48, 0''')
    for j in range(16):
        n=A.lab('R'); b=A.lab('R')
        A(f'''s_cmp_le_u32 s28, {j}
        s_cbranch_scc1 {n}
        s_add_u32 s48, s48, s{32+j}
        s_cmp_eq_u32 s30, {j}
        s_cbranch_scc1 {b}
        s_cmp_eq_u32 s31, {j}
        s_cbranch_scc0 {n}
        {b}:
        s_sub_u32 s48, s48, 32
        {n}:''')
    A(f'''s_add_u32 s48, s48, s29
    s_cmp_eq_u32 s{sMODE}, 0
    s_cbranch_scc1 PRO_SLOW
    s_mov_b32 s{sX}, 0
    s_cmp_eq_u32 s28, s30
    s_cbranch_scc1 PRO_CAND
    s_mov_b32 s{sX}, 1
    s_cmp_eq_u32 s28, s31
    s_cbranch_scc1 PRO_CAND
    s_mov_b32 s{sID}, s48
    s_branch WORKER
    PRO_CAND:
    s_mov_b32 s{sID}, s29
    s_cmp_lt_u32 s29, 32
    s_cbranch_scc1 REC
    s_sub_u32 s{sID}, s48, 32
    s_branch WORKER
    PRO_SLOW:
    s_lshr_b32 s{sX}, s48, 5
    s_and_b32 s{sID}, s48, 31
    s_cmp_lt_u32 s48, 64
    s_cbranch_scc1 REC
    s_sub_u32 s{sID}, s48, 64
    s_branch WORKER''')
def unpack(A,dst,src,n):
    for i in range(n):
        A(f'v_lshlrev_b32 v{dst+2*i}, 16, v{src+i}\nv_and_b32 v{dst+2*i+1}, 0xffff0000, v{src+i}')
def row_allreduce(A,r,op='v_add_f32'):
    for k in (8,4,2,1): A(f'{op}_dpp v{r}, v{r}, v{r} row_ror:{k} row_mask:0xf bank_mask:0xf')
def ln_stage(A):
    E=A.lab('LNE')
    srd(A,SA,0,2621440)
    A(f'''s_lshl_b32 s28, s{sID}, 2
    s_add_u32 s28, s28, s{sWV}
    s_cmp_ge_u32 s28, 512
    s_cbranch_scc1 {E}
    v_lshrrev_b32 v2, 4, v0
    v_mul_u32_u24 v2, 1280, v2
    v_and_b32 v3, 15, v0
    v_lshl_add_u32 v2, v3, 4, v2
    s_mul_i32 s29, s28, 5120
    s_add_u32 s30, s29, {XN}''')
    for p in range(5): A(f'buffer_load_dwordx4 v[{4+4*p}:{7+4*p}], v2, s[{SA}:{SA+3}], s29 offen offset:{256*p}')
    A('s_waitcnt vmcnt(0)')
    unpack(A,24,4,20)
    A('v_add_f32 v3, v24, v25')
    for i in range(26,64): A(f'v_add_f32 v3, v3, v{i}')
    row_allreduce(A,3)
    A('v_mul_f32 v3, 0x3acccccd, v3')
    for i in range(24,64): A(f'v_sub_f32 v{i}, v{i}, v3')
    A('v_mul_f32 v3, v24, v24')
    for i in range(25,64): A(f'v_fmac_f32 v3, v{i}, v{i}')
    row_allreduce(A,3)
    A('v_mov_b32 v64, 0x3727c5ac\nv_mov_b32 v65, 0x3acccccd\nv_fma_f32 v3, v3, v65, v64\nv_rsq_f32 v3, v3')
    for i in range(24,64): A(f'v_mul_f32 v{i}, v{i}, v3')
    for i in range(20): A(f'v_cvt_pk_bf16_f32 v{4+i}, v{24+2*i}, v{25+2*i}')
    for p in range(5): A(f'buffer_store_dwordx4 v[{4+4*p}:{7+4*p}], v2, s[{SWS}:{SWS+3}], s30 offen offset:{256*p} sc1')
    A(f'{E}:')
    stamp(A,23,2,[(sWV,0)])
    signal(A,C_LN)
    poll_ge(A,C_LN,192,2)
    stamp(A,24,2,[(sWV,0)])
ACC=64; F=[128,144]; VDA=160; VDB=164; VA0=168; VB0=172; VA=173; VB=177
sTA=50; sTB=51; sLDA=52; sLDB=53; sN=54; sTYPE=55; sRB=56; sNB=57; sSTEP=58; sKB=59; sCNT=60; sR=61; sW3=62; sWM=63; sT0=64; sT1=65; sPA=66; sPB=67; sOB=68
def gemm_dma(A):
    A(f's_and_b32 s{sT0}, s{sKB}, 3\ns_lshl_b32 s{sT0}, s{sT0}, 15\ns_lshl_b32 s{sT1}, s{sWV}, 12\ns_add_u32 s{sT0}, s{sT0}, s{sT1}\ns_mov_b32 m0, s{sT0}')
    for i in range(4): A(f'buffer_load_dwordx4 v{VDA+i}, s[{SWS}:{SWS+3}], s{sPA} offen offset:{1024*i} sc1 lds')
    A(f's_add_u32 m0, s{sT0}, 16384')
    for i in range(4): A(f'buffer_load_dwordx4 v{VDB+i}, s[{SB}:{SB+3}], s{sPB} offen offset:{1024*i} lds')
    A(f's_add_u32 s{sPA}, s{sPA}, 128\ns_lshl_b32 s{sT1}, s{sLDB}, 6\ns_add_u32 s{sPB}, s{sPB}, s{sT1}\ns_add_u32 s{sKB}, s{sKB}, 1')
def frag_reads(A,f,kk):
    b=F[f]
    for i in range(2): A(f'ds_read_b128 v[{b+4*i}:{b+4*i+3}], v{VA+kk} offset:{4096*i}')
    for j in range(2):
        for t in range(2): A(f'ds_read_b64_tr_b16 v[{b+8+4*j+2*t}:{b+8+4*j+2*t+1}], v{VB} offset:{8192*j+2048*kk+512*t}')
def frag_mfma(A,f,swap,zero=False):
    b=F[f]
    for i in range(2):
        for j in range(2):
            d=ACC+32*i+16*j; fa=f'v[{b+4*i}:{b+4*i+3}]'; fb=f'v[{b+8+4*j}:{b+8+4*j+3}]'
            x,y=(fb,fa) if swap else (fa,fb)
            A(f'v_mfma_f32_32x32x16_bf16 v[{d}:{d+15}], {x}, {y}, '+('0' if zero else f'v[{d}:{d+15}]'))
def gemm_step(A,swap,first,vm,dma):
    A(f's_waitcnt vmcnt({vm})\ns_barrier')
    A(f's_and_b32 s{sT0}, s{sSTEP}, 3\ns_lshl_b32 s{sT0}, s{sT0}, 15')
    for kk in range(4): A(f'v_add_u32 v{VA+kk}, s{sT0}, v{VA0+kk}')
    A(f'v_add_u32 v{VB}, s{sT0}, v{VB0}')
    frag_reads(A,0,0)
    if dma: gemm_dma(A)
    if not first: frag_mfma(A,1,swap)
    frag_reads(A,1,1); A('s_waitcnt lgkmcnt(6)'); frag_mfma(A,0,swap,zero=first)
    frag_reads(A,0,2); A('s_waitcnt lgkmcnt(6)'); frag_mfma(A,1,swap)
    frag_reads(A,1,3); A('s_waitcnt lgkmcnt(6)'); frag_mfma(A,0,swap)
    A(f's_waitcnt lgkmcnt(0)\ns_add_u32 s{sSTEP}, s{sSTEP}, 1')
def gemm_body(A,swap,name):
    gemm_step(A,swap,True,16,True)
    L=A.lab('GL')
    A(f'{L}:')
    gemm_step(A,swap,False,16,True)
    A(f's_cmp_lt_u32 s{sKB}, s{sN}\ns_cbranch_scc1 {L}')
    gemm_step(A,swap,False,16,False)
    gemm_step(A,swap,False,8,False)
    gemm_step(A,swap,False,0,False)
    frag_mfma(A,1,swap)
def silu(A,x,t):
    A(f'v_mul_f32 v{t}, 0xbfb8aa3b, v{x}\nv_exp_f32 v{t}, v{t}\nv_add_f32 v{t}, 1.0, v{t}\nv_rcp_f32 v{t}, v{t}\nv_mul_f32 v{x}, v{x}, v{t}')
def pack_swap(A,d,o):
    for q in range(4):
        A(f'v_cvt_pk_bf16_f32 v{o+2*q}, v{d+4*q}, v{d+4*q+1}\nv_cvt_pk_bf16_f32 v{o+2*q+1}, v{d+4*q+2}, v{d+4*q+3}')
    for qq in range(2):
        A(f'v_permlane32_swap_b32 v{o+4*qq}, v{o+4*qq+2}\nv_permlane32_swap_b32 v{o+4*qq+1}, v{o+4*qq+3}')
def worker_batch(A):
    A(f'''s_mul_i32 s{sW3}, s{sID}, 21846
    s_lshr_b32 s{sW3}, s{sW3}, 16
    s_mul_i32 s28, s{sW3}, 3
    s_sub_u32 s{sWM}, s{sID}, s28
    s_mov_b32 s{sR}, 0''')
    A(f'''s_lshr_b32 s28, s{sWV}, 1
    s_and_b32 s29, s{sWV}, 1
    v_and_b32 v2, 31, v0
    v_lshrrev_b32 v3, 5, v0
    v_bfe_u32 v4, v0, 1, 3
    s_lshl_b32 s30, s28, 13
    v_lshl_add_u32 v5, v2, 7, s30''')
    for kk in range(4):
        A(f'v_add_u32 v6, {2*kk}, v3\nv_xor_b32 v6, v6, v4\nv_lshl_add_u32 v{VA0+kk}, v6, 4, v5')
    A(f'''v_lshrrev_b32 v2, 5, v0
    v_bfe_u32 v3, v0, 2, 2
    v_lshl_add_u32 v2, v2, 3, v3
    v_lshlrev_b32 v2, 7, v2
    v_bfe_u32 v3, v0, 3, 1
    v_xor_b32 v3, s29, v3
    v_lshl_add_u32 v2, v3, 6, v2
    v_bfe_u32 v3, v0, 4, 1
    v_lshl_add_u32 v2, v3, 5, v2
    v_and_b32 v3, 3, v0
    v_lshl_add_u32 v2, v3, 3, v2
    v_add_u32 v{VB0}, 16384, v2''')
    A('WTASK:')
    A(f'''s_mul_i32 s28, s{sR}, 192
    s_add_u32 s28, s28, s{sID}
    s_cmp_ge_u32 s28, 2048
    s_cbranch_scc1 WBATCH_END
    s_cmp_ge_u32 s28, 960
    s_cbranch_scc1 WD1
    s_mul_i32 s{sRB}, s{sR}, 3
    s_add_u32 s{sRB}, s{sRB}, s{sWM}
    s_mov_b32 s{sNB}, s{sW3}
    s_branch WD_KV
    WD1:
    s_sub_u32 s28, s28, 960
    s_cmp_ge_u32 s28, 64
    s_cbranch_scc1 WD2
    s_mov_b32 s{sRB}, 15
    s_mov_b32 s{sNB}, s28
    WD_KV:
    s_mov_b32 s{sTYPE}, 0
    s_cmp_lt_u32 s{sNB}, 32
    s_cbranch_scc1 WD_K
    s_sub_u32 s{sNB}, s{sNB}, 32
    s_mov_b32 s{sTYPE}, 1''')
    srd(A,SB,32,5242880)
    A(f's_mov_b32 s{sOB}, {VF}\ns_branch WD_QKV\nWD_K:')
    srd(A,SB,24,5242880)
    A(f'''s_mov_b32 s{sOB}, {KF}
    s_branch WD_QKV
    WD2:
    s_sub_u32 s28, s28, 64
    s_cmp_ge_u32 s28, 432
    s_cbranch_scc1 WD3
    s_mul_i32 s29, s28, 607
    s_lshr_b32 s29, s29, 16
    s_mul_i32 s30, s29, 108
    s_sub_u32 s30, s28, s30
    s_and_b32 s31, s30, 3
    s_lshl_b32 s29, s29, 2
    s_add_u32 s{sRB}, s29, s31
    s_lshr_b32 s{sNB}, s30, 2
    s_mov_b32 s{sTYPE}, 3
    s_cmp_lt_u32 s{sWV}, 2
    s_cbranch_scc1 WD_G''')
    srd(A,SB,72,2211840); A('s_branch WD_G2\nWD_G:'); srd(A,SB,64,2211840)
    A(f'''WD_G2:
    s_mov_b32 s{sLDA}, 1280
    s_mov_b32 s{sLDB}, 3456
    s_mov_b32 s{sN}, 10
    s_lshl_b32 s{sTB}, s{sNB}, 7
    s_mul_i32 s{sTA}, s{sRB}, {128*1280}
    s_add_u32 s{sTA}, s{sTA}, {XN}
    s_branch WD_DONE
    WD3:
    s_sub_u32 s28, s28, 432
    s_cmp_ge_u32 s28, 512
    s_cbranch_scc1 WD4
    s_lshr_b32 s29, s28, 7
    s_lshl_b32 s29, s29, 2
    s_and_b32 s30, s28, 3
    s_add_u32 s{sRB}, s29, s30
    s_bfe_u32 s{sNB}, s28, 0x50002
    s_mov_b32 s{sTYPE}, 2''')
    srd(A,SB,16,5242880)
    A(f'''s_mov_b32 s{sOB}, {QF}
    WD_QKV:
    s_mov_b32 s{sLDA}, 1280
    s_mov_b32 s{sLDB}, 8192
    s_mov_b32 s{sN}, 10
    s_lshl_b32 s{sTB}, s{sNB}, 8
    s_lshr_b32 s29, s{sWV}, 1
    s_lshl_b32 s29, s29, 7
    s_add_u32 s{sTB}, s{sTB}, s29
    s_mul_i32 s{sTA}, s{sRB}, {128*1280}
    s_add_u32 s{sTA}, s{sTA}, {XN}
    s_branch WD_DONE
    WD4:
    s_sub_u32 s28, s28, 512
    s_mul_i32 s{sRB}, s28, 13108
    s_lshr_b32 s{sRB}, s{sRB}, 16
    s_mul_i32 s29, s{sRB}, 5
    s_sub_u32 s{sNB}, s28, s29
    s_mov_b32 s{sTYPE}, 4''')
    srd(A,SB,80,2211840)
    A(f'''s_mov_b32 s{sLDA}, 3456
    s_mov_b32 s{sLDB}, 1280
    s_mov_b32 s{sN}, 27
    s_lshl_b32 s{sTB}, s{sNB}, 8
    s_lshr_b32 s29, s{sWV}, 1
    s_lshl_b32 s29, s29, 7
    s_add_u32 s{sTB}, s{sTB}, s29
    s_mul_i32 s{sTA}, s{sRB}, {128*3456}
    s_add_u32 s{sTA}, s{sTA}, {HB}
    s_lshl_b32 s30, s{sRB}, 7
    s_add_u32 s30, s30, {C_H0}''')
    poll_ge(A,'s30',27,3)
    A('WD_DONE:')
    A(f'''v_lshrrev_b32 v2, 3, v0
    s_lshl_b32 s28, s{sWV}, 5
    v_add_u32 v3, s28, v2
    v_and_b32 v4, 7, v0
    v_lshrrev_b32 v5, 4, v0''')
    for i in range(4):
        A(f'''v_add_u32 v6, {8*i}, v3
        v_mul_lo_u32 v6, v6, s{sLDA}
        v_add_u32 v7, {(4*i)&7}, v5
        v_xor_b32 v7, v7, v4
        v_lshl_add_u32 v6, v7, 4, v6
        v_subrev_u32 v{VDA+i}, {1024*i}, v6''')
    A(f'''s_and_b32 s28, s{sWV}, 1
    s_lshl_b32 s28, s28, 5
    v_add_u32 v3, s28, v2
    v_and_b32 v5, 1, v5
    v_lshlrev_b32 v5, 2, v5
    v_xor_b32 v7, v5, v4''')
    for i in range(4):
        A(f'''v_add_u32 v6, {8*i}, v3
        v_mul_lo_u32 v6, v6, s{sLDB}
        v_lshl_add_u32 v6, v7, 4, v6
        v_subrev_u32 v{VDB+i}, {1024*i}, v6''')
    A(f's_mov_b32 s{sPA}, s{sTA}\ns_mov_b32 s{sPB}, s{sTB}\ns_mov_b32 s{sKB}, 0\ns_mov_b32 s{sSTEP}, 0')
    for i in range(3): gemm_dma(A)
    A(f's_cmp_eq_u32 s{sTYPE}, 1\ns_cbranch_scc1 WG_NS')
    gemm_body(A,True,'S')
    A(f's_cmp_eq_u32 s{sTYPE}, 3\ns_cbranch_scc1 WE_F1\ns_cmp_eq_u32 s{sTYPE}, 4\ns_cbranch_scc1 WE_F2')
    def kv_addr():
        A(f'''v_bfe_u32 v2, v0, 4, 1
        v_lshlrev_b32 v2, 10, v2
        v_lshrrev_b32 v3, 5, v0
        v_lshl_add_u32 v2, v3, 8, v2
        v_and_b32 v3, 15, v0
        v_lshl_add_u32 v2, v3, 4, v2
        s_and_b32 s28, s{sWV}, 1
        s_lshl_b32 s28, s28, 11
        v_add_u32 v2, s28, v2
        s_lshl_b32 s28, s{sRB}, 2
        s_and_b32 s29, s{sWV}, 2
        s_add_u32 s28, s28, s29
        s_lshl_b32 s28, s28, 5
        s_add_u32 s28, s28, s{sNB}
        s_lshl_b32 s28, s28, 13
        s_add_u32 s28, s28, s{sOB}''')
    kv_addr()
    for i in range(2):
        for j in range(2):
            o=8+16*i+8*j
            pack_swap(A,ACC+32*i+16*j,o)
            A(f's_add_u32 s29, s28, {i*262144+j*4096}')
            for q in range(2): A(f'buffer_store_dwordx4 v[{o+4*q}:{o+4*q+3}], v2, s[{SWS}:{SWS+3}], s29 offen offset:{512*q} sc1')
    A(f's_cmp_eq_u32 s{sTYPE}, 0\ns_mov_b32 s30, {C_Q0}\ns_cselect_b32 s30, {C_KV0}, s30\ns_branch WE_SIG')
    A('WG_NS:')
    gemm_body(A,False,'N')
    kv_addr()
    for i in range(2):
        for j in range(2):
            o=8+16*i+8*j; d=ACC+32*i+16*j
            for pc,(qa,qb) in enumerate(((0,2),(1,3))):
                for k,q in enumerate((qa,qb)):
                    A(f'v_cvt_pk_bf16_f32 v{o+4*pc+2*k}, v{d+4*q}, v{d+4*q+1}\nv_cvt_pk_bf16_f32 v{o+4*pc+2*k+1}, v{d+4*q+2}, v{d+4*q+3}')
            A(f's_add_u32 s29, s28, {i*262144+j*4096}')
            for q in range(2): A(f'buffer_store_dwordx4 v[{o+4*q}:{o+4*q+3}], v2, s[{SWS}:{SWS+3}], s29 offen offset:{512*q} sc1')
    A(f's_mov_b32 s30, {C_KV0}\ns_branch WE_SIG')
    def rm_addr(ld):
        A(f'''v_and_b32 v2, 31, v0
        s_lshr_b32 s28, s{sWV}, 1
        s_lshl_b32 s28, s28, 6
        v_add_u32 v2, s28, v2
        v_mul_u32_u24 v2, {ld}, v2
        v_lshrrev_b32 v3, 5, v0
        v_lshl_add_u32 v2, v3, 4, v2
        s_and_b32 s28, s{sWV}, 1
        s_lshl_b32 s28, s28, 6
        v_add_u32 v2, s28, v2''')
    A('WE_F1:')
    rm_addr(3456)
    A(f's_mul_i32 s28, s{sRB}, {128*3456}\ns_lshl_b32 s29, s{sNB}, 7\ns_add_u32 s28, s28, s29\ns_add_u32 s28, s28, {HB}')
    for i in range(2):
        d=ACC+32*i
        for r in range(16):
            silu(A,d+r,4+(r&3)); A(f'v_mul_f32 v{d+r}, v{d+r}, v{d+16+r}')
        o=8+8*i
        pack_swap(A,d,o)
        A(f's_add_u32 s29, s28, {i*32*3456}')
        for q in range(2): A(f'buffer_store_dwordx4 v[{o+4*q}:{o+4*q+3}], v2, s[{SWS}:{SWS+3}], s29 offen offset:{32*q} sc1')
    A(f's_mov_b32 s30, {C_H0}\ns_branch WE_SIG')
    A('WE_F2:')
    rm_addr(1280)
    A(f's_mul_i32 s28, s{sRB}, {128*1280}\ns_lshl_b32 s29, s{sNB}, 8\ns_add_u32 s28, s28, s29\ns_add_u32 s28, s28, {GB}')
    for i in range(2):
        for j in range(2):
            d=ACC+32*i+16*j; o=8+16*i+8*j
            for r in range(16): silu(A,d+r,4+(r&3))
            pack_swap(A,d,o)
            A(f's_add_u32 s29, s28, {i*32*1280+j*128}')
            for q in range(2): A(f'buffer_store_dwordx4 v[{o+4*q}:{o+4*q+3}], v2, s[{SWS}:{SWS+3}], s29 offen offset:{32*q} sc1')
    A(f's_mov_b32 s30, {C_G0}')
    A(f'WE_SIG:\ns_lshl_b32 s29, s{sRB}, 7\ns_add_u32 s30, s30, s29')
    signal(A,'s30')
    A(f's_add_u32 s{sR}, s{sR}, 1\ns_branch WTASK\nWBATCH_END:')
    stamp(A,25,2,[(sWV,0)])
```

```python
from asmlib import *
from gen1 import *
WL=0; VXL=122880; MI=131072; EX=141312; RED=EX+4096; OI=149504; KX=151552; SPARE=159744
sS=50; sBUF=51; sBUFN=52; sBUFR=53; sTAG=54; sPW0=55; sPW1=56; sPW2=57; sPR=58; sSL=59; sKVO=60; sLOC=61; sREM=62; sFM=63; sT=64; sT2=65; sT3=66; sCNT=67; sSC=68; sLG=70; sRG=71; sFMP=46; sWU=47; sIML=48; sIMR=49; sPUB=44; sKMO=45
EXM=70
SMF='v_smfmac_f32_16x16x64_bf16'
Areg=lambda i:8+4*i
DQ=[28,32]; DK=[36,40]; DV=[44,48]; L=[52,60]
class Q:
    def __init__(s,A,name): s.A=A; s.q=[]; s.name=name
    def add(s,tag,n=1): s.q+= [tag]*n
    def wait(s,tag):
        if tag not in s.q: return
        i=max(k for k,t in enumerate(s.q) if t==tag); n=len(s.q)-1-i
        s.A(f's_waitcnt {s.name}({n})'); s.q=s.q[i+1:]
    def all(s): s.A(f's_waitcnt {s.name}(0)'); s.q=[]
def slotreg(p): return a(8*p,8) if p<32 else v(72+8*(p-32),8)
def slotpair(p,t): return a(8*p+2*t,2) if p<32 else v(72+8*(p-32)+2*t,2)
def P_loc(i,m): return 5*i+m
def P_rem(i,m): return 25+4*i+m
def P_wo(ks,t): return 45+5*ks+t
def ldsslot_addr(k,half):
    return (6,k*8192+1024*half) if k<8 else (7,(k-8)*8192+1024*half)
def read_slot(A,dq,k,dst,tag):
    for hf in range(2):
        r,o=ldsslot_addr(k,hf); A(f'ds_read_b128 v[{dst+4*hf}:{dst+4*hf+3}], v{r} offset:{o}')
    dq.add(tag,2)
TSON=False
TSM=0; TSB=36
def TS(A,k):
    if not TSON: return
    if TSM==3:
        if k!=0: return
        for j in range(11):
            l=A.lab('TS'); A(f's_cmp_lg_u32 s{sS}, {TSB+j}\ns_cbranch_scc1 {l}\ns_memtime s[{72+2*j}:{73+2*j}]\n{l}:')
        return
    st=21 if TSM==0 else (10+4*(k//2) if TSM==1 else 10+4*((k+1)//2))
    if k==10: st+=1
    l=A.lab('TS'); A(f's_cmp_lg_u32 s{sS}, {st}\ns_cbranch_scc1 {l}\ns_memtime s[{72+2*k}:{73+2*k}]\n{l}:')
def modal(A,fast,slow):
    l1=A.lab('MS'); l2=A.lab('MD')
    A(f's_cmp_eq_u32 s{sMODE}, 0\ns_cbranch_scc1 {l1}'); A(fast); A(f's_branch {l2}\n{l1}:'); A(slow); A(f'{l2}:')
def weights_prologue(A):
    units=[]
    for i in range(5): units+=[('q',0,0,i),('q',1,0,i),('k',0,0,i),('k',1,0,i),('v',0,0,i)]
    for i in range(5): units+=[('q',0,1,i),('q',1,1,i),('k',0,1,i),('k',1,1,i)]
    for ks in range(2):
        for t in range(5): units.append(('o',t,ks,0))
    rem=[('v',k&1,1,k>>1) for k in range(10)]
    units+=rem[5:10]
    units+=[('v',1,0,i) for i in range(5)]
    units+=rem[0:5]
    assert len(units)==70
    SR={'q':8,'k':12,'v':16,'o':20}
    srd(A,8,16,5242880); srd(A,12,24,5242880); srd(A,16,32,5242880); srd(A,20,40,5242880)
    A(f'''v_lshrrev_b32 v2, 3, v0
    s_lshl_b32 s28, s{sWV}, 4
    v_add_u32 v2, s28, v2
    v_bfe_u32 v3, v0, 1, 2
    v_lshrrev_b32 v4, 5, v0
    v_and_b32 v5, 1, v0''')
    for ii in range(2):
        A(f'''v_add_u32 v6, {2*ii}, v4
        v_and_b32 v6, 3, v6
        v_xor_b32 v6, v6, v3
        v_lshl_or_b32 v6, v6, 1, v5
        v_lshlrev_b32 v6, 4, v6
        v_add_u32 v7, {8*ii}, v2
        v_lshl_add_u32 v{58+ii}, v7, 13, v6
        v_mul_u32_u24 v7, 1280, v7
        v_add_u32 v{60+ii}, v7, v6
        v_subrev_u32 v{58+ii}, {1024*ii}, v{58+ii}
        v_subrev_u32 v{60+ii}, {1024*ii}, v{60+ii}''')
    A(f'''v_lshrrev_b32 v2, 5, v0
    v_lshlrev_b32 v2, 4, v2
    v_bfe_u32 v3, v0, 4, 1
    v_lshl_add_u32 v2, v3, 2, v2
    v_bfe_u32 v4, v0, 2, 1
    v_add_u32 v2, v2, v4
    v_bfe_u32 v4, v0, 3, 1
    v_lshl_add_u32 v2, v4, 3, v2
    v_lshlrev_b32 v2, 7, v2
    v_lshl_add_u32 v3, v4, 1, v3
    v_xor_b32 v3, s{sWV}, v3
    v_lshl_add_u32 v2, v3, 5, v2
    v_and_b32 v3, 3, v0
    v_lshl_add_u32 v62, v3, 3, v2
    v_add_u32 v63, 0x10000, v62
    s_lshl_b32 s28, s{sWV}, 11
    v_lshl_add_u32 v64, v0, 4, s28
    v_add_u32 v65, 0x10000, v64''')
    A(f'''s_lshl_b32 s40, s{sID}, 8
    s_mul_i32 s41, s{sX}, {5*64*8192}
    s_sub_u32 s42, {5*64*8192}, s41
    s_add_u32 s41, s41, s40
    s_add_u32 s42, s42, s40
    s_mul_i32 s43, s{sID}, {128*1280}
    s_mul_i32 s44, s{sX}, 640
    s_add_u32 s43, s43, s44
    s_lshl_b32 s45, s{sWV}, 11''')
    def issue(j):
        for i in range(5):
            m,u,rel,ii=units[5*j+i]; pos=(j%3)*5+i
            if m=='o': A(f's_add_u32 s28, s43, {rel*64*1280+u*128}'); vv=60
            else: A(f's_add_u32 s28, s{41+rel}, {ii*64*8192+u*128}'); vv=58
            A(f's_add_u32 m0, s45, {pos*8192}')
            for k in range(2): A(f'buffer_load_dwordx4 v{vv+k}, s[{SR[m]}:{SR[m]+3}], s28 offen offset:{1024*k} lds')
    for j in range(3): issue(j)
    for j in range(14):
        A(f's_waitcnt vmcnt({10*min(2,13-j)})\ns_barrier')
        for i in range(5):
            pos=(j%3)*5+i; r,o=(62,pos*8192) if pos<8 else (63,pos*8192-65536)
            for t in range(4):
                off=o+4096*(t>>1)+256*(t&1)
                dst=slotpair(5*j+i,t) if j<11 else v(8+8*i+2*t,2)
                A(f'ds_read_b64_tr_b16 {dst}, v{r} offset:{off}')
            if i%2==1: A('s_waitcnt lgkmcnt(4)')
        A('s_waitcnt lgkmcnt(0)\ns_barrier')
        if j>=11:
            for i in range(5):
                pos=(j%3)*5+i; r,o=(64,pos*8192) if pos<8 else (65,pos*8192-65536)
                for hf in range(2): A(f'ds_write_b128 v{r}, v[{8+8*i+4*hf}:{8+8*i+4*hf+3}] offset:{o+1024*hf}')
            A('s_waitcnt lgkmcnt(0)')
        if j+3<14: issue(j+3)

def chk(A,regs,n,t=68):
    A(f'v_max3_u32 v{t}, v{regs}, v{regs+1}, v{regs+2}')
    A(f'v_max3_u32 v{t}, v{t}, v{regs+3}, v{regs+4}\nv_max3_u32 v{t+1}, v{regs+5}, v{regs+6}, v{regs+7}\nv_max_u32 v{t}, v{t}, v{t+1}')
    A(f'v_cmp_eq_u32 vcc, -1, v{t}')
def gl(A,regs,soff):
    for i in range(2): A(f'buffer_load_dwordx4 v[{regs+4*i}:{regs+4*i+3}], v0, s[{SWS}:{SWS+3}], s{soff} offen offset:{1024*i} sc1')
def gather_wait(A,regs,soff,code):
    Lp=A.lab('GP'); D=A.lab('GD')
    A(f'{Lp}:\ns_waitcnt vmcnt(0)')
    chk(A,regs,2)
    A(f's_cbranch_vccz {D}')
    gl(A,regs,soff)
    A(f's_add_u32 s{sCNT}, s{sCNT}, 1\ns_cmp_lt_u32 s{sCNT}, {SPIN}\ns_cbranch_scc1 {Lp}')
    abort(A,code)
    A(f'{D}:')
def kv_dma(A,part):
    if part==0:
        A(f"""s_lshl_b32 s{sT2}, s{sWV}, 11
        s_add_u32 s{sT}, s{sKVO}, s{sT2}
        s_add_u32 s{sT}, s{sT}, {KF}
        s_add_u32 m0, s{sT2}, {KX}
        s_lshl_b32 s{sT3}, s{sWV}, 10
        buffer_load_dwordx4 v0, s[{SWS}:{SWS+3}], s{sT} offen sc1 lds
        buffer_load_dwordx4 v0, s[{SWS}:{SWS+3}], s{sT} offen offset:1024 sc1 lds""")
    else:
        A(f"""s_add_u32 s{sT}, s{sKVO}, s{sT3}
        s_add_u32 s{sT}, s{sT}, {VF}
        s_add_u32 m0, s{sT2}, {VXL}
        s_add_u32 s{sT3}, s{sT}, 3072
        buffer_load_dwordx4 v0, s[{SWS}:{SWS+3}], s{sT} offen sc1 lds
        buffer_load_dwordx4 v0, s[{SWS}:{SWS+3}], s{sT3} offen offset:1024 sc1 lds""")
def rec(A,opts):
    global TSON,TSM
    TSON=any(o in opts for o in('ts','tse','tso','tss')); TSM=1 if 'tse' in opts else 2 if 'tso' in opts else 3 if 'tss' in opts else 0
    me=[(sID,0),(sX,0),(sWV,0)]
    stamp(A,17,2,me)
    weights_prologue(A)
    stamp(A,18,2,me)
    A(f"""v_and_b32 v8, 15, v0
    v_lshrrev_b32 v9, 4, v0
    s_lshl_b32 s28, s{sWV}, 4
    v_add_u32 v2, s28, v8
    v_lshlrev_b32 v2, 5, v2
    v_lshl_add_u32 v2, v9, 3, v2
    v_add_u32 v2, {EX}, v2
    v_bfe_u32 v10, v0, 2, 2
    v_lshl_add_u32 v3, v9, 3, v10
    v_lshlrev_b32 v3, 5, v3
    v_and_b32 v10, 3, v0
    v_lshl_add_u32 v3, v10, 3, v3
    v_add_u32 v3, {EX}, v3
    v_lshrrev_b32 v10, 2, v8
    v_lshrrev_b32 v12, 5, v0
    v_lshl_add_u32 v10, v10, 1, v12
    v_lshlrev_b32 v10, 1, v10
    v_add_u32 v10, s28, v10
    v_and_b32 v11, 1, v0
    v_add_u32 v10, v10, v11
    v_lshlrev_b32 v10, 4, v10
    v_and_b32 v12, 1, v9
    v_lshl_add_u32 v4, v12, 3, v10
    v_add_u32 v4, {OI}, v4
    v_mov_b32 v1, 0x4444
    v_mov_b32 v12, 0xeeee
    v_bfe_u32 v11, v0, 1, 1
    v_cmp_eq_u32 vcc, 1, v11
    v_cndmask_b32 v1, v1, v12, vcc
    v_lshlrev_b32 v0, 4, v0
    v_add_u32 v5, {MI}, v0
    s_lshl_b32 s28, s{sWV}, 11
    v_add_u32 v6, s28, v0
    v_add_u32 v7, 0x10000, v6""")
    A(f"""s_mov_b32 s{sS}, 0
    s_mov_b32 s{sBUF}, {MEMB}
    s_mov_b32 s{sBUFN}, {MEMB+20480}
    s_mov_b32 s{sBUFR}, {MEMB+40960}
    s_mov_b32 s{sTAG}, 0
    s_lshl_b32 s28, s{sX}, 5
    s_add_u32 s28, s28, s{sID}
    s_mul_i32 s{sPW0}, s28, 10240
    s_lshl_b32 s29, s{sWV}, 9
    s_add_u32 s{sPW0}, s{sPW0}, s29
    s_add_u32 s{sPW0}, s{sPW0}, {PBUF}
    s_add_u32 s{sPW1}, s{sPW0}, 4096
    s_add_u32 s{sPW2}, s{sPW0}, 8192
    s_lshl_b32 s28, s{sX}, 5
    s_lshl_b32 s29, s{sWV}, 3
    s_add_u32 s28, s28, s29
    s_mul_i32 s{sPR}, s28, 10240
    s_lshl_b32 s29, s{sID}, 9
    s_add_u32 s{sPR}, s{sPR}, s29
    s_add_u32 s{sPR}, s{sPR}, {PBUF}
    s_mul_i32 s{sSL}, s{sX}, 5120
    s_lshl_b32 s29, s{sID}, 8
    s_add_u32 s{sSL}, s{sSL}, s29
    s_lshl_b32 s{sKVO}, s{sID}, 13
    s_lshl_b32 s{sFM}, s{sID}, 5
    s_lshl_b32 s28, s{sX}, 4
    s_add_u32 s{sFM}, s{sFM}, s28
    s_lshl_b32 s28, s{sWV}, 2
    s_add_u32 s{sFM}, s{sFM}, s28
    s_add_u32 s{sFM}, s{sFM}, {F_M}
    s_mov_b32 s{sFMP}, 0x19000
    s_mov_b32 s{sSC}, 0x3e0293ee
    s_mov_b32 s{sCNT}, 0
    s_cmp_gt_u32 s{sWV}, 1
    s_cselect_b32 s{sWU}, {VF-KF}, 0
    s_add_u32 s{sWU}, s{sWU}, {KF}
    s_and_b32 s28, s{sWV}, 1
    s_lshl_b32 s28, s28, 12
    s_add_u32 s{sWU}, s{sWU}, s28
    s_add_u32 s{sWU}, s{sWU}, {32*8192}""")
    A(f"""s_sub_u32 s28, s{sWV}, 1
    s_lshl_b32 s28, s28, 11
    s_cmp_eq_u32 s{sWV}, 3
    s_cselect_b32 s{sIML}, 3072, s28
    s_mul_i32 s{sLOC}, s{sX}, 5120
    s_sub_u32 s{sREM}, {5120+10240}, s{sLOC}
    s_add_u32 s{sLOC}, s{sLOC}, s{sIML}
    s_lshl_b32 s{sIMR}, s{sWV}, 10
    s_add_u32 s{sREM}, s{sREM}, s{sIMR}
    s_add_u32 s{sIMR}, s{sIMR}, 5120
    s_add_u32 s{sIML}, s{sIML}, {MI}
    s_add_u32 s{sIMR}, s{sIMR}, {MI}
    s_add_u32 s{sLG}, s{sBUF}, s{sLOC}
    s_add_u32 s{sRG}, s{sBUF}, s{sREM}""")
    if 'norecwait' not in opts: poll_ge(A,C_KV0,64,10,vt=8)
    stamp(A,19,8,me)
    A(f's_cmp_eq_u32 s{sMODE}, 0\ns_cbranch_scc1 STEP_S')
    step(A,opts,'F',me); step(A,opts,'S',me)
    A(f"""RECEND:
    s_waitcnt vmcnt(0)
    s_add_u32 s{sT}, s{sFM}, {63*1024}
    buffer_store_dword v1, off, s[{SWS}:{SWS+3}], s{sT} sc1""")
    stamp(A,29,8,me)
    if TSON:
        l=A.lab('T')
        A(f's_or_b32 s28, s{sID}, s{sX}\ns_or_b32 s28, s28, s{sWV}\ns_cmp_lg_u32 s28, 0\ns_cbranch_scc1 {l}\ns_waitcnt lgkmcnt(0)')
        srd(A,SC,96,256)
        for k in range(12): A(f's_mov_b32 s28, s{72+2*k}\nv_mov_b32 v8, s28\nv_mov_b32 v9, {128+4*k}\nbuffer_store_dword v8, v9, s[{SC}:{SC+3}], 0 offen')
        A(f'v_mov_b32 v8, s{sCNT}\nv_mov_b32 v9, {128+48}\nbuffer_store_dword v8, v9, s[{SC}:{SC+3}], 0 offen')
        A(f'{l}:')
    A('s_waitcnt vmcnt(0)\ns_endpgm')
def step(A,opts,M,me):
    fast=M=='F'; pl='' if fast else ' sc1'
    RI=int([o[2:] for o in opts if o.startswith('ri')][0]) if any(o.startswith('ri') for o in opts) else 0
    KD=int([o[2:] for o in opts if o.startswith('kd')][0]) if any(o.startswith('kd') for o in opts) else 0
    dq=Q(A,'lgkmcnt')
    WS=f's[{SWS}:{SWS+3}]'
    def smf(D,a_,B): A(f'{SMF} v[{D}:{D+3}], v[{a_}:{a_+3}], {B}, v1')
    def fold(D,dst): A(f'v_pk_add_f32 v[{D}:{D+1}], v[{D}:{D+1}], v[{D+2}:{D+3}]\nv_cvt_pk_bf16_f32 v{dst}, v{D}, v{D+1}')
    DQ0,DK0,DQ1,DK1=28,32,36,40
    A(f'STEP_{M}:')
    if fast:
        for k,sv in enumerate((16,32,48)): stamp(A,20+k,8,me+[(sS,sv)])
    TS(A,0)
    z0=A.lab('Z'); ld=A.lab('LD')
    A(f's_cmp_eq_u32 s{sWV}, 0\ns_cbranch_scc1 {z0}')
    gl(A,8,sLG)
    A(f'{z0}:')
    read_slot(A,dq,0,L[0],'L')
    for r in range(28,52,2): A(f'v_mov_b64 v[{r}:{r+1}], 0')
    A(f's_cbranch_scc1 {ld}')
    gather_wait(A,8,sLG,11)
    A(f'v_add_u32 v68, s{sIML}, v0\nds_write_b128 v68, v[8:11]\nds_write_b128 v68, v[12:15] offset:1024\n{ld}:')
    dq.all(); A('s_barrier')
    TS(A,1)
    for i in range(5): A(f'ds_read_b128 v[{Areg(i)}:{Areg(i)+3}], v5 offset:{1024*i}'); dq.add(f'A{i}')
    if RI<0: gl(A,60,sRG)
    for i in range(5):
        dq.wait(f'A{i}')
        for m,D in enumerate((DQ0,DQ1,DK0,DK1,DV[0])): smf(D,Areg(i),slotreg(P_loc(i,m)))
        dq.wait('L')
        smf(DV[1],Areg(i),v(L[0],8))
        if i<4: read_slot(A,dq,i+1,L[0],'L')
        if i==RI: gl(A,60,sRG)
        if i==max(RI,0)+KD: kv_dma(A,0)
        if i==max(RI,0)+KD+1: kv_dma(A,1)
    TS(A,2)
    gather_wait(A,60,sRG,13)
    A(f'v_add_u32 v68, s{sIMR}, v0\nds_write_b128 v68, v[60:63]\nds_write_b128 v68, v[64:67] offset:1024')
    dq.all(); A('s_barrier')
    TS(A,3)
    for i in range(5): A(f'ds_read_b128 v[{Areg(i)}:{Areg(i)+3}], v5 offset:{5120+1024*i}'); dq.add(f'A{i}')
    for j in range(2):
        for kt in range(2): A(f'ds_read_b128 v[{52+8*j+4*kt}:{55+8*j+4*kt}], v5 offset:{KX-MI+2048*j+1024*kt}'); dq.add(f'K{j}')
    A(f'buffer_store_dword v1, off, {WS}, s{sFMP} sc1')
    for i in range(5): dq.wait(f'A{i}'); smf(DQ0,Areg(i),slotreg(P_rem(i,0)))
    A(f'v_lshlrev_b32 v70, 2, v0\ns_add_u32 s{sT}, s{sKVO}, s{sWU}\ns_mov_b32 m0, {SPARE}')
    smf(DK0,Areg(0),slotreg(P_rem(0,2)))
    A(f'buffer_load_dword v70, {WS}, s{sT} offen sc1 lds')
    for i in range(1,5): smf(DK0,Areg(i),slotreg(P_rem(i,2)))
    fold(DQ0,68)
    smf(DQ1,Areg(0),slotreg(P_rem(0,1)))
    b2=A.lab('B'); b4=A.lab('B')
    A(f"""s_and_b32 s{sT}, s{sS}, 3
    s_cmp_lg_u32 s{sT}, 1
    s_cbranch_scc1 {b2}
    s_lshr_b32 s{sT}, s{sS}, 2
    s_lshl_b32 s{sT}, s{sT}, 7
    s_add_u32 s{sT}, s{sT}, {C_KV0+128}
    s_lshl_b32 s{sT2}, s{sWV}, 8
    s_add_u32 m0, s{sT2}, {SPARE+1024}
    s_nop 0
    buffer_load_dword {WS}, s{sT} sc1 lds
    {b2}:""".replace(f'buffer_load_dword {WS}, s{sT} sc1 lds',f'buffer_load_dword off, {WS}, s{sT} sc1 lds'))
    smf(DQ1,Areg(1),slotreg(P_rem(1,1)))
    smf(DQ1,Areg(2),slotreg(P_rem(2,1)))
    fold(DK0,69)
    A('ds_write_b64 v2, v[68:69]'); dq.add('W')
    smf(DQ1,Areg(3),slotreg(P_rem(3,1)))
    smf(DQ1,Areg(4),slotreg(P_rem(4,1)))
    smf(DK1,Areg(0),slotreg(P_rem(0,3)))
    A(f"""s_cmp_lg_u32 s{sWV}, 0
    s_cbranch_scc1 {b4}
    s_cmp_ge_u32 s{sID}, 20
    s_cbranch_scc1 {b4}
    v_mov_b32 v70, -1
    v_lshrrev_b32 v71, 2, v0
    s_add_u32 s{sT}, s{sBUFR}, s{sSL}
    s_add_u32 s{sT2}, s{sT}, 10240
    buffer_store_dword v70, v71, {WS}, s{sT} offen{pl}
    buffer_store_dword v70, v71, {WS}, s{sT2} offen sc1
    {b4}:""")
    smf(DK1,Areg(1),slotreg(P_rem(1,3)))
    smf(DK1,Areg(2),slotreg(P_rem(2,3)))
    fold(DQ1,70)
    smf(DK1,Areg(3),slotreg(P_rem(3,3)))
    smf(DK1,Areg(4),slotreg(P_rem(4,3)))
    A(f's_lshr_b32 s{sKMO}, s{sKVO}, 1\ns_lshl_b32 s{sT}, s{sWV}, 10\ns_add_u32 s{sKMO}, s{sKMO}, s{sT}\ns_add_u32 s{sKMO}, s{sKMO}, {KM}')
    fold(DK1,71)
    A('ds_write_b64 v2, v[70:71] offset:2048'); dq.add('W')
    dq.all(); A('s_barrier')
    TS(A,4)
    S0,S1,SM=28,32,68
    F=lambda j:8+4*j
    for j in range(4):
        for t in range(2): A(f'ds_read_b64_tr_b16 v[{F(j)+2*t}:{F(j)+2*t+1}], v3 offset:{1024*j+128*t}')
        dq.add(f'F{j}',2)
    k1=A.lab('K')
    A(f's_cmp_lg_u32 s{sX}, 0\ns_cbranch_scc1 {k1}\nbuffer_store_dwordx4 v[68:71], v0, {WS}, s{sKMO} offen sc1\n{k1}:')
    A(f'ds_read_b128 v[24:27], v5 offset:{KX-MI+2048*2}\nds_read_b128 v[40:43], v5 offset:{KX-MI+2048*2+1024}'); dq.add('K2',2)
    A(f'ds_read_b128 v[36:39], v5 offset:{KX-MI+2048*3}'); dq.add('K3a')
    def mm(j,k0,k1_):
        for D,a_ in ((S0,k0),(S1,k1_),(SM,F(j))):
            A(f'v_mfma_f32_16x16x32_bf16 v[{D}:{D+3}], v[{a_}:{a_+3}], v[{F(j)}:{F(j)+3}], '+('0' if j==0 else f'v[{D}:{D+3}]'))
    def rdA(i): A(f'ds_read_b128 v[{Areg(i)}:{Areg(i)+3}], v5 offset:{5120+1024*i}'); dq.add(f'A{i}')
    LV=[60,36,52]
    dq.wait('F0'); A('s_nop 1'); mm(0,52,56)
    A(f'ds_read_b128 v[52:55], v5 offset:{KX-MI+2048*3+1024}'); dq.add('K3b')
    rdA(0)
    dq.wait('F1'); mm(1,60,64)
    read_slot(A,dq,5,LV[0],'V0'); rdA(1)
    dq.wait('K2'); mm(2,24,40)
    rdA(2); rdA(4)
    dq.wait('K3b'); mm(3,36,52)
    TS(A,5)
    rdA(3); read_slot(A,dq,6,LV[1],'V1'); read_slot(A,dq,7,LV[2],'V2')
    vq=list(range(10))
    def vstep():
        if not vq: return
        k=vq.pop(0); i=k>>1
        dq.wait(f'A{i}'); dq.wait(f'V{k}')
        smf(DV[k&1],Areg(i),v(LV[k%3],8))
        if k+3<10: read_slot(A,dq,5+k+3,LV[k%3],f'V{k+3}')
        if k==1: A(f'ds_read_b128 v[8:11], v7 offset:{VXL-65536}'); dq.add('VX')
        if k==3: A(f'ds_read_b128 v[12:15], v7 offset:{VXL-65536+1024}'); dq.add('VX')
    vstep()
    A('v_max3_f32 v68, v28, v29, v30\nv_max3_f32 v69, v31, v32, v33\nv_max3_f32 v68, v68, v34, v35\nv_max3_f32 v69, v69, v70, v71\nv_max_f32 v68, v68, v69')
    A('v_mov_b32 v69, v68'); vstep()
    A('v_permlane16_swap_b32 v68, v69\nv_max_f32 v68, v68, v69\nv_mov_b32 v69, v68'); vstep()
    A('v_permlane32_swap_b32 v68, v69\nv_max_f32 v68, v68, v69')
    A(f'v_mul_f32 v68, s{sSC}, v68')
    for r in (28,30,32,34,70): A(f'v_pk_fma_f32 v[{r}:{r+1}], v[{r}:{r+1}], s[{sSC}:{sSC+1}], v[68:69] op_sel_hi:[1,0,0] neg_lo:[0,0,1] neg_hi:[0,0,1]')
    vstep()
    for r in (28,29,30): A(f'v_exp_f32 v{r}, v{r}')
    vstep()
    for r in (31,32): A(f'v_exp_f32 v{r}, v{r}')
    vstep()
    for r in (33,34): A(f'v_exp_f32 v{r}, v{r}')
    vstep()
    for r in (35,70): A(f'v_exp_f32 v{r}, v{r}')
    vstep()
    A('v_exp_f32 v71, v71')
    A('v_pk_add_f32 v[68:69], v[28:29], v[30:31]\nv_pk_add_f32 v[68:69], v[68:69], v[32:33]')
    vstep()
    A('v_pk_add_f32 v[68:69], v[68:69], v[34:35]\nv_pk_add_f32 v[68:69], v[68:69], v[70:71]')
    A('v_cvt_pk_bf16_f32 v28, v28, v29\nv_cvt_pk_bf16_f32 v29, v30, v31')
    vstep()
    assert not vq
    A('v_cvt_pk_bf16_f32 v30, v32, v33\nv_cvt_pk_bf16_f32 v31, v34, v35')
    A('v_cvt_pk_bf16_f32 v32, v70, v71\nv_mov_b64 v[34:35], 0\nv_add_f32 v68, v68, v69')
    dq.wait('VX')
    A('v_mfma_f32_16x16x32_bf16 v[16:19], v[8:11], v[28:31], 0\nv_mfma_f32_16x16x32_bf16 v[20:23], v[12:15], v[28:31], 0')
    A('v_mov_b32 v33, 0\nv_mov_b32 v35, v32\nv_mov_b32 v69, v68\nv_lshrrev_b32 v24, 1, v0')
    A('v_permlane16_swap_b32 v68, v69')
    A('v_pk_add_f32 v[44:45], v[44:45], v[46:47]\nv_pk_add_f32 v[48:49], v[48:49], v[50:51]')
    A('v_add_f32 v68, v68, v69\nv_cvt_pk_bf16_f32 v44, v44, v45\nv_cvt_pk_bf16_f32 v45, v48, v49\nv_mov_b32 v69, v68')
    A('v_mov_b64 v[52:53], 0')
    A('v_mfma_f32_16x16x16_bf16 v[16:19], v[44:45], v[32:33], v[16:19]\nv_mfma_f32_16x16x16_bf16 v[20:23], v[44:45], v[34:35], v[20:23]')
    A('v_permlane32_swap_b32 v68, v69\nv_add_f32 v68, v68, v69\nv_rcp_f32 v68, v68')
    k1=A.lab('K')
    A(f"""s_cmp_lg_u32 s{sX}, 1
    s_cbranch_scc1 {k1}
    s_lshr_b32 s{sT2}, s{sKVO}, 2
    s_lshl_b32 s{sT}, s{sWV}, 9
    s_add_u32 s{sT2}, s{sT2}, s{sT}
    s_add_u32 s{sT2}, s{sT2}, {VM}
    buffer_store_dwordx2 v[44:45], v24, {WS}, s{sT2} offen sc1
    {k1}:""")
    for r in range(54,68,2): A(f'v_mov_b64 v[{r}:{r+1}], 0')
    A('v_mov_b64 v[36:37], 0\nv_mov_b64 v[38:39], 0')
    for r in (16,18,20,22): A(f'v_pk_mul_f32 v[{r}:{r+1}], v[{r}:{r+1}], v[68:69] op_sel_hi:[1,0]')
    A('v_cvt_pk_bf16_f32 v40, v16, v17\nv_cvt_pk_bf16_f32 v41, v18, v19\nv_cvt_pk_bf16_f32 v42, v20, v21\nv_cvt_pk_bf16_f32 v43, v22, v23')
    A('s_mov_b32 exec_lo, 0x33333333\ns_mov_b32 exec_hi, 0x33333333')
    A(f'ds_write_b64 v4, v[40:41]\nds_write_b64 v4, v[42:43] offset:1024\ns_mov_b64 exec, -1\ns_cmp_eq_u32 s{sS}, 63\ns_cbranch_scc1 RECEND')
    dq.all(); A('s_barrier')
    TS(A,6)
    A(f'ds_read_b128 v[44:47], v5 offset:{OI-MI}\nds_read_b128 v[48:51], v5 offset:{OI-MI+1024}'); dq.add('O0'); dq.add('O1')
    WD=[52,56,60,64,36]
    so=[(sPW0,0),(sPW0,2048),(sPW1,0),(sPW1,2048),(sPW2,0)]
    def wo(t,ks): A(f'{SMF} v[{WD[t]}:{WD[t]+3}], v[{44+4*ks}:{47+4*ks}], {slotreg(P_wo(ks,t))}, v1')
    def pst(t):
        d=WD[t]
        A(f'v_pk_add_f32 v[{d}:{d+1}], v[{d}:{d+1}], v[{d+2}:{d+3}]\nv_and_or_b32 v{d}, v{d}, v25, s{sTAG}')
        A(f'buffer_store_dwordx2 v[{d}:{d+1}], v24, {WS}, s{so[t][0]} offen offset:{so[t][1]}{pl}')
    A('v_mov_b32 v25, -2')
    dq.wait('O0'); wo(0,0); dq.wait('O1'); wo(0,1); wo(1,0); wo(1,1)
    for t in range(2,5): wo(t,0); pst(t-2); wo(t,1)
    pst(3); pst(4)
    TS(A,7)
    nr=A.lab('NR')
    A(f's_cmp_ge_u32 s{sID}, 20\ns_cbranch_scc1 {nr}')
    A(f"""v_lshrrev_b32 v8, 9, v0
    v_mul_u32_u24 v8, 10240, v8
    v_and_b32 v9, 0x1f0, v0
    v_add_u32 v8, v8, v9
    s_add_u32 s{sT}, s{sPR}, 20480
    s_add_u32 s{sT2}, s{sPR}, 40960
    s_add_u32 s{sT3}, s{sPR}, 61440""")
    Lp=A.lab('RP'); D=A.lab('RD'); C=A.lab('RC')
    def pl_():
        for i,so_ in enumerate((sPR,sT,sT2,sT3)): A(f'buffer_load_dwordx4 v[{28+4*i}:{31+4*i}], v8, {WS}, s{so_} offen sc1')
    pl_()
    A(f"""v_bfe_u32 v11, v0, 7, 2
    v_lshlrev_b32 v11, 6, v11
    v_bfe_u32 v12, v0, 6, 1
    v_lshl_add_u32 v11, v12, 5, v11
    v_lshrrev_b32 v12, 9, v0
    v_lshl_add_u32 v11, v12, 4, v11
    s_lshl_b32 s28, s{sWV}, 9
    s_add_u32 s28, s28, {RED}
    v_add_u32 v10, s28, v24
    s_add_u32 s{sPUB}, s{sBUFN}, s{sSL}
    s_add_u32 s29, s{sPUB}, 10240""")
    A(f'{Lp}:\ns_waitcnt vmcnt(0)')
    for i in range(4): A(f'v_bitop3_b32 v{12+i}, v{28+4*i}, v{30+4*i}, s{sTAG} bitop3:0x7e')
    A('v_or3_b32 v12, v12, v13, v14\nv_or_b32 v12, v12, v15\nv_and_b32 v12, 1, v12\nv_cmp_ne_u32 vcc, 0, v12')
    A(f's_cbranch_vccz {D}')
    pl_()
    A(f's_add_u32 s{sCNT}, s{sCNT}, 1\ns_cmp_lt_u32 s{sCNT}, {SPIN}\ns_cbranch_scc1 {Lp}')
    abort(A,16)
    A(f'{D}:')
    TS(A,8)
    A('v_pk_add_f32 v[28:29], v[28:29], v[32:33]\nv_pk_add_f32 v[30:31], v[30:31], v[34:35]\nv_pk_add_f32 v[36:37], v[36:37], v[40:41]\nv_pk_add_f32 v[38:39], v[38:39], v[42:43]')
    A('v_pk_add_f32 v[28:29], v[28:29], v[36:37]\nv_pk_add_f32 v[30:31], v[30:31], v[38:39]')
    A('v_permlane32_swap_b32 v28, v29\nv_permlane32_swap_b32 v30, v31\nv_add_f32 v28, v28, v29\nv_add_f32 v29, v30, v31')
    A(f'ds_write_b64 v10, v[28:29]\nv_add_u32 v10, {RED}, v24\ns_cmp_lg_u32 s{sWV}, 0\ns_waitcnt lgkmcnt(0)\ns_barrier')
    A(f's_cbranch_scc1 {nr}')
    for w in range(4): A(f'ds_read_b64 v[{28+2*w}:{29+2*w}], v10 offset:{512*w}')
    A('s_mov_b32 s30, 0x11111111\ns_mov_b32 s31, s30\ns_waitcnt lgkmcnt(2)\nv_pk_add_f32 v[28:29], v[28:29], v[30:31]\ns_waitcnt lgkmcnt(0)\nv_pk_add_f32 v[32:33], v[32:33], v[34:35]\nv_pk_add_f32 v[28:29], v[28:29], v[32:33]')
    A('v_cvt_pk_bf16_f32 v28, v28, v29\nv_min_u32 v28, -2, v28')
    for k in range(4): A(f'v_mov_b32_dpp v{32+k}, v28 quad_perm:[{k},{k},{k},{k}] row_mask:0xf bank_mask:0xf')
    A('s_mov_b64 exec, s[30:31]')
    A(f'buffer_store_dwordx4 v[32:35], v11, {WS}, s29 offen sc1\nbuffer_store_dwordx4 v[32:35], v11, {WS}, s{sPUB} offen{pl}\ns_mov_b64 exec, -1')
    A(f'{nr}:')
    TS(A,9)
    A(f's_add_u32 s{sKVO}, s{sKVO}, {32*8192}')
    c1=A.lab('C')
    A(f"""s_and_b32 s{sT}, s{sS}, 3
    s_cmp_lg_u32 s{sT}, 2
    s_cbranch_scc1 {c1}
    s_cmp_ge_u32 s{sS}, 60
    s_cbranch_scc1 {c1}
    s_lshl_b32 s{sT2}, s{sWV}, 8
    s_add_u32 s{sT2}, s{sT2}, {SPARE+1024}
    v_mov_b32 v68, s{sT2}
    ds_read_b32 v68, v68
    s_waitcnt lgkmcnt(0)
    v_readfirstlane_b32 s{sT2}, v68
    s_cmp_ge_u32 s{sT2}, 64
    s_cbranch_scc1 {c1}
    s_lshr_b32 s{sT}, s{sS}, 2
    s_lshl_b32 s{sT}, s{sT}, 7
    s_add_u32 s{sT}, s{sT}, {C_KV0+128}""")
    if 'norecwait' not in opts: poll_ge(A,f's{sT}',64,15,vt=68)
    A(f'{c1}:')
    A(f"""s_lshl_b32 s{sFMP}, s{sS}, 10
    s_add_u32 s{sFMP}, s{sFMP}, s{sFM}
    s_mov_b32 s{sT}, s{sBUF}
    s_mov_b32 s{sBUF}, s{sBUFN}
    s_mov_b32 s{sBUFN}, s{sBUFR}
    s_mov_b32 s{sBUFR}, s{sT}
    s_add_u32 s{sLG}, s{sBUF}, s{sLOC}
    s_add_u32 s{sRG}, s{sBUF}, s{sREM}
    s_xor_b32 s{sTAG}, s{sTAG}, 1
    s_add_u32 s{sS}, s{sS}, 1""")
    TS(A,10)
    A(f's_branch STEP_{M}')
```

```python
from asmlib import *
from gen1 import *
import struct
def f32(x): return '0x%08x'%struct.unpack('<I',struct.pack('<f',x))[0]
sS=50; sH=51; sT=52; sT2=53; sT3=54; sB=55; sSC=56; sCNT=57; sFL=58; sPAR=59; sCS=60
MK=70
def wave_signal(A,soff,vt=2):
    A(f's_waitcnt vmcnt(0)\nv_mov_b32 v{vt}, 1\nv_mov_b32 v{vt+1}, 0\ns_mov_b64 exec, 1\nbuffer_atomic_add v{vt}, v{vt+1}, s[{SWS}:{SWS+3}], s{soff} offen\ns_mov_b64 exec, -1')
def allred(A,r,t,op):
    A(f'v_mov_b32 v{t}, v{r}\nv_permlane16_swap_b32 v{r}, v{t}\n{op} v{r}, v{r}, v{t}\nv_mov_b32 v{t}, v{r}\nv_permlane32_swap_b32 v{r}, v{t}\n{op} v{r}, v{r}, v{t}')
def attn(A,opts):
    Q=8;K=40;V=72;KMr=104;VMr=120;S00,S01,S11,SM0,SM1=128,132,136,140,144;O=160;NEG=148
    A(f'''ATT:
    s_lshr_b32 s{sS}, s{sID}, 3
    s_and_b32 s{sH}, s{sID}, 7
    s_lshl_b32 s{sH}, s{sH}, 2
    s_add_u32 s{sH}, s{sH}, s{sWV}
    v_lshlrev_b32 v1, 4, v0
    v_and_b32 v2, 15, v0
    v_lshrrev_b32 v3, 4, v0
    v_lshlrev_b32 v3, 2, v3
    s_mov_b32 s{sSC}, 0x3e0293ee
    v_mov_b32 v{NEG}, {f32(-1e9*128**0.5)}''')
    A(f'''s_lshl_b32 s28, s{sWV}, 12
    v_lshlrev_b32 v4, 5, v2
    v_lshl_add_u32 v4, v3, 1, v4
    v_add_u32 v154, s28, v4
    v_bfe_u32 v4, v0, 2, 2
    v_lshl_add_u32 v4, v3, 1, v4
    v_lshlrev_b32 v4, 5, v4
    v_and_b32 v5, 3, v0
    v_lshl_add_u32 v4, v5, 3, v4
    v_add_u32 v155, s28, v4''')
    for i in range(4): A(f'v_add_u32 v4, {i}, v3\nv_cmp_le_u32 s[{MK+2*i}:{MK+2*i+1}], v4, v2')
    A('ATL:')
    A(f's_lshr_b32 s{sT}, s{sS}, 2\ns_lshl_b32 s{sT}, s{sT}, 7\ns_add_u32 s{sT2}, s{sT}, {C_Q0}\ns_add_u32 s{sT}, s{sT}, {C_KV0}')
    poll_ge(A,f's{sT2}',32,20); poll_ge(A,f's{sT}',64,21)
    A(f's_lshl_b32 s{sB}, s{sS}, 5\ns_add_u32 s{sB}, s{sB}, s{sH}\ns_lshl_b32 s{sT3}, s{sB}, 13')
    for base,r in ((QF,Q),(KF,K),(VF,V)):
        A(f's_add_u32 s{sT}, s{sT3}, {base}\ns_add_u32 s{sT2}, s{sT}, 4096')
        for i in range(8): A(f'buffer_load_dwordx4 v[{r+4*i}:{r+4*i+3}], v1, s[{SWS}:{SWS+3}], s{sT if i<4 else sT2} offen offset:{1024*(i&3)} sc1')
    A('s_waitcnt vmcnt(8)')
    fr=lambda b,j,t: v(b+4*(2*j+t),4)
    for j in range(4):
        for D,kt,qt in ((S00,0,0),(S01,0,1),(S11,1,1)):
            A(f'v_mfma_f32_16x16x32_bf16 v[{D}:{D+3}], {fr(K,j,kt)}, {fr(Q,j,qt)}, '+('0' if j==0 else f'v[{D}:{D+3}]'))
    L=A.lab('AF'); D=A.lab('AD')
    A(f'''s_lshl_b32 s{sFL}, s{sB}, 5
    s_add_u32 s{sFL}, s{sFL}, {F_M}
    v_and_b32 v2, 7, v0
    v_lshlrev_b32 v2, 2, v2
    s_mov_b32 s{sCNT}, 0
    {L}:
    buffer_load_dword v3, v2, s[{SWS}:{SWS+3}], s{sFL} offen sc1
    s_waitcnt vmcnt(0)
    v_cmp_eq_u32 vcc, 0, v3
    s_cbranch_vccz {D}
    s_add_u32 s{sCNT}, s{sCNT}, 1
    s_cmp_lt_u32 s{sCNT}, {SPIN}
    s_cbranch_scc1 {L}''')
    abort(A,22)
    A(f'''{D}:
    s_lshl_b32 s{sT}, s{sB}, 12
    s_add_u32 s{sT}, s{sT}, {KM}
    s_lshl_b32 s{sT2}, s{sB}, 11
    s_add_u32 s{sT2}, s{sT2}, {VM}
    v_lshlrev_b32 v2, 3, v0''')
    KT=O
    for j in range(4): A(f'buffer_load_dwordx4 v[{KT+4*j}:{KT+4*j+3}], v1, s[{SWS}:{SWS+3}], s{sT} offen offset:{1024*j} sc1')
    for w in range(4): A(f'buffer_load_dwordx2 v[{VMr+2*w}:{VMr+2*w+1}], v2, s[{SWS}:{SWS+3}], s{sT2} offen offset:{512*w} sc1')
    for i in range(4):
        A(f'v_cndmask_b32 v{S00+i}, v{NEG}, v{S00+i}, s[{MK+2*i}:{MK+2*i+1}]\nv_cndmask_b32 v{S11+i}, v{NEG}, v{S11+i}, s[{MK+2*i}:{MK+2*i+1}]')
    for w in range(4):
        A(f's_waitcnt vmcnt({7-w})')
        for u in range(2): A(f'ds_write_b64 v154, v[{KT+4*w+2*u}:{KT+4*w+2*u+1}] offset:{512*w+2048*u}')
    A('s_waitcnt lgkmcnt(0)')
    for j in range(4):
        for t in range(2): A(f'ds_read_b64_tr_b16 v[{KMr+4*j+2*t}:{KMr+4*j+2*t+1}], v155 offset:{1024*j+128*t}')
    for j in range(4):
        A(f's_waitcnt lgkmcnt({6-2*j})')
        for D_,qt in ((SM0,0),(SM1,1)):
            A(f'v_mfma_f32_16x16x32_bf16 v[{D_}:{D_+3}], v[{KMr+4*j}:{KMr+4*j+3}], {fr(Q,j,qt)}, '+('0' if j==0 else f'v[{D_}:{D_+3}]'))
    m0,m1,t0,t1=150,151,152,153
    A(f'v_max3_f32 v{m0}, v{S00}, v{S00+1}, v{S00+2}\nv_max3_f32 v{m1}, v{S01}, v{S01+1}, v{S01+2}\nv_max3_f32 v{t0}, v{S01+3}, v{S11}, v{S11+1}\nv_max3_f32 v{m1}, v{m1}, v{S11+2}, v{S11+3}')
    A(f'v_max_f32 v{m0}, v{m0}, v{S00+3}\nv_max_f32 v{m1}, v{m1}, v{t0}')
    A(f'v_max3_f32 v{m0}, v{m0}, v{SM0+2}, v{SM0+3}\nv_max3_f32 v{m1}, v{m1}, v{SM1+2}, v{SM1+3}')
    allred(A,m0,t0,'v_max_f32'); allred(A,m1,t1,'v_max_f32')
    A(f'v_mul_f32 v{m0}, s{sSC}, v{m0}\nv_mul_f32 v{m1}, s{sSC}, v{m1}')
    r0=[S00+i for i in range(4)]+[SM0+2,SM0+3]; r1=[S01+i for i in range(4)]+[S11+i for i in range(4)]+[SM1+2,SM1+3]
    for r in r0: A(f'v_fma_f32 v{r}, v{r}, s{sSC}, -v{m0}')
    for r in r1: A(f'v_fma_f32 v{r}, v{r}, s{sSC}, -v{m1}')
    for r in r0+r1: A(f'v_exp_f32 v{r}, v{r}')
    def ssum(d,rs):
        A(f'v_add_f32 v{d}, v{rs[0]}, v{rs[1]}')
        for r in rs[2:]: A(f'v_add_f32 v{d}, v{d}, v{r}')
    ssum(m0,r0); ssum(m1,r1)
    P0,P1,PM0,PM1=224,228,232,236
    A(f'''v_cvt_pk_bf16_f32 v{P0}, v{S00}, v{S00+1}
    v_cvt_pk_bf16_f32 v{P0+1}, v{S00+2}, v{S00+3}
    v_mov_b32 v{P0+2}, 0
    v_mov_b32 v{P0+3}, 0
    v_cvt_pk_bf16_f32 v{P1}, v{S01}, v{S01+1}
    v_cvt_pk_bf16_f32 v{P1+1}, v{S01+2}, v{S01+3}
    v_cvt_pk_bf16_f32 v{P1+2}, v{S11}, v{S11+1}
    v_cvt_pk_bf16_f32 v{P1+3}, v{S11+2}, v{S11+3}
    v_cvt_pk_bf16_f32 v{PM0}, v{SM0+2}, v{SM0+3}
    v_mov_b32 v{PM0+1}, 0
    v_mov_b32 v{PM0+2}, 0
    v_mov_b32 v{PM0+3}, v{PM0}
    v_cvt_pk_bf16_f32 v{PM1}, v{SM1+2}, v{SM1+3}
    v_mov_b32 v{PM1+1}, 0
    v_mov_b32 v{PM1+2}, 0
    v_mov_b32 v{PM1+3}, v{PM1}''')
    for et in range(8):
        for qt,P in ((0,P0),(1,P1)):
            d=O+4*(2*et+qt); A(f'v_mfma_f32_16x16x32_bf16 v[{d}:{d+3}], v[{V+4*et}:{V+4*et+3}], v[{P}:{P+3}], 0')
    allred(A,m0,t0,'v_add_f32'); allred(A,m1,t1,'v_add_f32')
    A(f'v_rcp_f32 v{m0}, v{m0}\nv_rcp_f32 v{m1}, v{m1}\ns_waitcnt vmcnt(0)')
    for et in range(8):
        u,w=et>>2,et&3
        for qt,P in ((0,PM0),(1,PM1)):
            d=O+4*(2*et+qt); A(f'v_mfma_f32_16x16x16_bf16 v[{d}:{d+3}], v[{VMr+2*w}:{VMr+2*w+1}], v[{P+2*u}:{P+2*u+1}], v[{d}:{d+3}]')
    A(f'''s_lshl_b32 s{sT}, s{sS}, 18
    s_lshl_b32 s{sT2}, s{sH}, 13
    s_add_u32 s{sT}, s{sT}, s{sT2}
    s_add_u32 s{sT}, s{sT}, {OF}
    s_add_u32 s{sT2}, s{sT}, 4096''')
    for et in range(8):
        d=O+8*et; R=8+4*et
        for i in range(4): A(f'v_mul_f32 v{d+i}, v{d+i}, v{m0}\nv_mul_f32 v{d+4+i}, v{d+4+i}, v{m1}')
        A(f'v_cvt_pk_bf16_f32 v{R}, v{d}, v{d+1}\nv_cvt_pk_bf16_f32 v{R+1}, v{d+2}, v{d+3}\nv_cvt_pk_bf16_f32 v{R+2}, v{d+4}, v{d+5}\nv_cvt_pk_bf16_f32 v{R+3}, v{d+6}, v{d+7}')
        A(f'v_permlane16_swap_b32 v{R}, v{R+2}\nv_permlane16_swap_b32 v{R+1}, v{R+3}')
        A(f'buffer_store_dwordx4 v[{R}:{R+3}], v1, s[{SWS}:{SWS+3}], s{sT if et<4 else sT2} offen offset:{1024*(et&3)} sc1')
    A(f's_lshl_b32 s{sT}, s{sS}, 7\ns_add_u32 s{sT}, s{sT}, {C_O0}')
    wave_signal(A,sT)
    A(f's_add_u32 s{sS}, s{sS}, 8\ns_cmp_lt_u32 s{sS}, 64\ns_cbranch_scc1 ATL\ns_waitcnt vmcnt(0)')
    stamp(A,26,2)
    A('s_waitcnt vmcnt(0)\ns_endpgm')
def wo(A,opts):
    RING=16; NR=56; ACC=240
    A(f'''WO:
    s_sub_u32 s28, s{sID}, 64
    s_mul_i32 s{sS}, s28, 3277
    s_lshr_b32 s{sS}, s{sS}, 16
    s_mul_i32 s29, s{sS}, 20
    s_sub_u32 s{sCS}, s28, s29''')
    srd(A,SA,40,5242880); srd(A,SB,0,2621440); srd(A,SD,88,2621440)
    A(f'''v_lshrrev_b32 v2, 2, v0
    v_mul_u32_u24 v2, 1280, v2
    v_and_b32 v3, 3, v0
    v_lshl_add_u32 v2, v3, 4, v2
    s_mul_i32 s{sT}, s{sWV}, {1024*1280}
    s_lshl_b32 s{sT2}, s{sCS}, 6
    s_add_u32 s{sT}, s{sT}, s{sT2}
    s_lshl_b32 s{sT2}, s{sWV}, 15
    v_lshrrev_b32 v4, 5, v0
    v_lshlrev_b32 v4, 3, v4
    v_bfe_u32 v5, v0, 2, 2
    v_add_u32 v4, v4, v5
    v_lshlrev_b32 v4, 6, v4
    v_bfe_u32 v5, v0, 4, 1
    v_lshl_add_u32 v4, v5, 5, v4
    v_lshl_add_u32 v4, v3, 3, v4
    v_add_u32 v4, s{sT2}, v4''')
    for half in range(2):
        A(f's_mov_b32 m0, s{sT2}')
        for i in range(32):
            A(f'buffer_load_dwordx4 v2, s[{SA}:{SA+3}], s{sT} offen lds\ns_add_u32 s{sT}, s{sT}, {16*1280}')
            if i<31: A('s_add_u32 m0, m0, 1024')
        A('s_waitcnt vmcnt(0)')
        for i in range(32):
            for t in range(2):
                r=4*(32*half+i)+2*t
                A(f'ds_read_b64_tr_b16 a[{r}:{r+1}], v4 offset:{1024*i+256*t}')
            if i%4==3: A('s_waitcnt lgkmcnt(4)')
        A('s_waitcnt lgkmcnt(0)')
    A(f'''s_barrier
    v_lshlrev_b32 v1, 4, v0
    v_and_b32 v2, 31, v0
    v_mul_u32_u24 v2, 1280, v2
    v_lshrrev_b32 v3, 5, v0
    v_lshl_add_u32 v2, v3, 3, v2
    s_lshl_b32 s{sT}, s{sWV}, 4
    s_lshl_b32 s{sT2}, s{sCS}, 6
    s_add_u32 s{sT}, s{sT}, s{sT2}
    v_add_u32 v8, s{sT}, v2
    s_mov_b32 s{sPAR}, 0''')
    stamp(A,27,2)
    A('WOL:')
    A(f's_lshr_b32 s{sT}, s{sS}, 2\ns_lshl_b32 s{sT}, s{sT}, 7\ns_add_u32 s{sT}, s{sT}, {C_G0}')
    poll_ge(A,f's{sT}',5,23)
    A(f's_mul_i32 s{sB}, s{sS}, {32*1280}\ns_add_u32 s{sT}, s{sB}, {GB}')
    A(f'buffer_load_dwordx2 v[4:5], v8, s[{SB}:{SB+3}], s{sB} offen\nbuffer_load_dwordx2 v[6:7], v8, s[{SWS}:{SWS+3}], s{sT} offen sc1')
    A(f's_lshl_b32 s{sT}, s{sS}, 7\ns_add_u32 s{sT}, s{sT}, {C_O0}')
    poll_ge(A,f's{sT}',32,24)
    A(f's_lshl_b32 s{sT}, s{sS}, 18\ns_lshl_b32 s{sT2}, s{sWV}, 16\ns_add_u32 s{sT}, s{sT}, s{sT2}\ns_add_u32 s{sT}, s{sT}, {OF}')
    def ld(i):
        sl=RING+4*(i%NR)
        A(f'buffer_load_dwordx4 v[{sl}:{sl+3}], v1, s[{SWS}:{SWS+3}], s{sT} offen offset:{1024*(i&3)} sc1')
        if i&3==3: A(f's_add_u32 s{sT}, s{sT}, 4096')
    for i in range(NR): ld(i)
    for i in range(64):
        A(f's_waitcnt vmcnt({NR-1 if i<64-NR else 63-i})')
        sl=RING+4*(i%NR)
        A(f'v_mfma_f32_32x32x16_bf16 v[{ACC}:{ACC+15}], a[{4*i}:{4*i+3}], v[{sl}:{sl+3}], '+('0' if i==0 else f'v[{ACC}:{ACC+15}]'))
        if i<64-NR: ld(NR+i)
    A(f's_lshl_b32 s{sT}, s{sWV}, 12\ns_add_u32 s{sT}, s{sT}, s{sPAR}\nv_add_u32 v9, s{sT}, v1')
    for q in range(4): A(f'ds_write_b128 v9, v[{ACC+4*q}:{ACC+4*q+3}] offset:{1024*q}')
    A(f's_lshl_b32 s{sT}, s{sWV}, 10\ns_add_u32 s{sT}, s{sT}, s{sPAR}\nv_add_u32 v9, s{sT}, v1\ns_waitcnt lgkmcnt(0)\ns_barrier')
    for w in range(4): A(f'ds_read_b128 v[{16+4*w}:{19+4*w}], v9 offset:{4096*w}')
    unpack(A,32,4,2); unpack(A,36,6,2)
    A('s_waitcnt lgkmcnt(0)')
    for i in range(4): A(f'v_add_f32 v{16+i}, v{16+i}, v{20+i}\nv_add_f32 v{24+i}, v{24+i}, v{28+i}')
    for i in range(4): A(f'v_add_f32 v{16+i}, v{16+i}, v{24+i}')
    A('v_cvt_pk_bf16_f32 v20, v16, v17\nv_cvt_pk_bf16_f32 v21, v18, v19'); unpack(A,16,20,2)
    for i in range(4): A(f'v_mul_f32 v{16+i}, v{16+i}, v{36+i}')
    A('v_cvt_pk_bf16_f32 v20, v16, v17\nv_cvt_pk_bf16_f32 v21, v18, v19'); unpack(A,16,20,2)
    for i in range(4): A(f'v_add_f32 v{16+i}, v{16+i}, v{32+i}')
    A('v_cvt_pk_bf16_f32 v20, v16, v17\nv_cvt_pk_bf16_f32 v21, v18, v19')
    A(f'buffer_store_dwordx2 v[20:21], v8, s[{SD}:{SD+3}], s{sB} offen')
    A(f's_xor_b32 s{sPAR}, s{sPAR}, 16384\ns_add_u32 s{sS}, s{sS}, 6\ns_cmp_lt_u32 s{sS}, 64\ns_cbranch_scc1 WOL\ns_waitcnt vmcnt(0)')
    stamp(A,28,2)
    A('s_waitcnt vmcnt(0)\ns_endpgm')
def worker3(A,opts):
    A(f's_cmp_lt_u32 s{sID}, 64\ns_cbranch_scc1 ATT\ns_cmp_lt_u32 s{sID}, 184\ns_cbranch_scc1 WO\ns_endpgm')
    attn(A,opts); wo(A,opts)
```

```python
from asmlib import *
KN='recurrent_scan__memory_aug_recurrent_mem_tr__swiglu_ffn__prompt'
C_LN=0
C_KV0=0x400; C_Q0=0x1400; C_H0=0x1c00; C_G0=0x2400; C_O0=0x2c00
STAMP=0x31000; GO=0x32000
F_M=0x8000
MEMB=0x20000; PBUF=0x40000; XN=0x100000; KF=0x400000; VF=0x1400000; QF=0x2400000
HB=0x3400000; GB=0x3B00000; KM=0x3E00000; VM=0x4600000; OF=0x4A00000
SPIN=1<<17
SWS=4; SA=8; SB=12; SC=16; SD=20
sWV=24; sID=25; sX=26; sMODE=27
def srd(A,base,arg,nbytes):
    A(f's_load_dwordx2 s[{base}:{base+1}], s[0:1], {arg}\ns_waitcnt lgkmcnt(0)\ns_mov_b32 s{base+2}, {nbytes}\ns_mov_b32 s{base+3}, 0x20000')
def abort(A,code):
    A(f'v_mov_b32 v2, {code}\nv_mov_b32 v3, {STAMP+160}\nbuffer_store_dword v2, v3, s[{SWS}:{SWS+3}], 0 offen sc1\ns_waitcnt vmcnt(0)\ns_endpgm')
def poll_ge(A,soff,target,code,vt=2,st=28):
    L=A.lab('PL'); D=A.lab('PD')
    if isinstance(soff,int): A(f'v_mov_b32 v{vt+1}, {soff}\ns_mov_b32 s{st}, 0'); soff=0
    else: A(f'v_mov_b32 v{vt+1}, 0\ns_mov_b32 s{st}, 0')
    A(f'{L}:')
    A(f'buffer_load_dword v{vt}, v{vt+1}, s[{SWS}:{SWS+3}], {soff} offen sc1\ns_waitcnt vmcnt(0)\nv_readfirstlane_b32 s{st+1}, v{vt}')
    A(f's_cmp_ge_u32 s{st+1}, {target}\ns_cbranch_scc1 {D}\ns_add_u32 s{st}, s{st}, 1\ns_cmp_lt_u32 s{st}, {SPIN}\ns_cbranch_scc1 {L}')
    abort(A,code)
    A(f'{D}:')
def poll_all(A,soff,n,code,vt=2,st=28):
    L=A.lab('PL'); D=A.lab('PD')
    A(f'v_mbcnt_lo_u32_b32 v{vt+1}, -1, 0\nv_mbcnt_hi_u32_b32 v{vt+1}, -1, v{vt+1}')
    if n==192: A(f'v_min_u32 v{vt+1}, 47, v{vt+1}\nv_lshlrev_b32 v{vt+1}, 4, v{vt+1}')
    else:
        if n<64: A(f'v_min_u32 v{vt+1}, {n-1}, v{vt+1}')
        A(f'v_lshlrev_b32 v{vt+1}, 2, v{vt+1}')
    if isinstance(soff,int):
        if soff: A(f'v_add_u32 v{vt+1}, {soff}, v{vt+1}')
        soff=0
    A(f's_mov_b32 s{st}, 0\n{L}:')
    if n==192:
        A(f'buffer_load_dwordx4 v[{vt+2}:{vt+5}], v{vt+1}, s[{SWS}:{SWS+3}], {soff} offen sc1\ns_waitcnt vmcnt(0)\nv_min_u32 v{vt}, v{vt+2}, v{vt+3}\nv_min3_u32 v{vt}, v{vt}, v{vt+4}, v{vt+5}')
    else:
        A(f'buffer_load_dword v{vt}, v{vt+1}, s[{SWS}:{SWS+3}], {soff} offen sc1\ns_waitcnt vmcnt(0)')
    A(f'v_cmp_eq_u32 vcc, 0, v{vt}\ns_cbranch_vccz {D}\ns_add_u32 s{st}, s{st}, 1\ns_cmp_lt_u32 s{st}, {SPIN}\ns_cbranch_scc1 {L}')
    abort(A,code)
    A(f'{D}:')
def signal(A,soff,vt=2):
    L=A.lab('SG')
    A(f's_waitcnt vmcnt(0)\ns_barrier\ns_cmp_lg_u32 s{sWV}, 0\ns_cbranch_scc1 {L}')
    if isinstance(soff,int): A(f'v_mov_b32 v{vt+1}, {soff}'); soff=0
    else: A(f'v_mov_b32 v{vt+1}, 0')
    A(f'v_mov_b32 v{vt}, 1\ns_mov_b64 exec, 1\nbuffer_store_dword v{vt}, v{vt+1}, s[{SWS}:{SWS+3}], {soff} offen sc1\ns_mov_b64 exec, -1')
    A(f'{L}:')
TR=False
def stamp(A,slot,vt=2,cond=None):
    if not TR: return
    L=A.lab('ST')
    for r,val in (cond or []): A(f's_cmp_lg_u32 s{r}, {val}\ns_cbranch_scc1 {L}')
    A(f's_load_dwordx2 s[92:93], s[0:1], 104\ns_memrealtime s[90:91]\ns_waitcnt lgkmcnt(0)\ns_mov_b32 s94, 0x100000\ns_mov_b32 s95, 0x20000')
    A(f'v_mov_b32 v{vt}, s90\nv_mov_b32 v{vt+1}, {STAMP+4*slot}\ns_mov_b64 s[96:97], exec\ns_mov_b64 exec, 1\nbuffer_atomic_umax v{vt}, v{vt+1}, s[92:95], 0 offen\ns_mov_b64 exec, s[96:97]\n{L}:')
def prologue(A,opts=()):
    A(f'''s_cmp_ge_u32 s2, 256
    s_cbranch_scc1 KEND
    v_lshrrev_b32 v1, 6, v0
    s_nop 0
    v_readfirstlane_b32 s{sWV}, v1''')
    stamp(A,16,2,[(2,0),(sWV,0)])
    srd(A,SWS,104,0x10000000)
    srd(A,SC,96,256)
    srd(A,SA,8,10240)
    A(f'''v_mov_b32 v4, -1
    v_mov_b32 v5, -1
    v_mov_b32 v6, -1
    v_mov_b32 v7, -1
    v_mov_b32 v8, 0
    v_mov_b32 v9, 0
    v_mov_b32 v10, 0
    v_mov_b32 v11, 0
    v_lshlrev_b32 v2, 4, v0
    s_mul_i32 s28, s2, 2560
    s_add_u32 s28, s28, {PBUF}
    s_mul_i32 s29, s2, 384
    s_mul_i32 s30, s2, 160
    s_add_u32 s30, s30, {MEMB+20480}
    v_cmp_gt_u32 vcc, 160, v0
    s_and_saveexec_b64 s[32:33], vcc
    buffer_store_dwordx4 v[4:7], v2, s[{SWS}:{SWS+3}], s28 offen sc1
    v_cmp_gt_u32 vcc, 24, v0
    s_and_b64 exec, exec, vcc
    buffer_store_dwordx4 v[8:11], v2, s[{SWS}:{SWS+3}], s29 offen sc1
    v_cmp_gt_u32 vcc, 10, v0
    s_and_b64 exec, exec, vcc
    buffer_store_dwordx4 v[4:7], v2, s[{SWS}:{SWS+3}], s30 offen sc1
    s_mov_b64 exec, 1
    s_lshl_b32 s31, s2, 3
    s_add_u32 s31, s31, {GO}
    s_cmp_lg_u32 s{sWV}, 0
    s_cbranch_scc1 PRO_NG
    buffer_store_dwordx2 v[8:9], v2, s[{SWS}:{SWS+3}], s31 offen sc1
    PRO_NG:
    s_mov_b64 exec, s[32:33]
    s_cmp_ge_u32 s2, 10
    s_cbranch_scc1 PRO_NOMEM
    s_cmp_lg_u32 s{sWV}, 0
    s_cbranch_scc1 PRO_NOMEM
    v_bfe_u32 v3, v0, 2, 2
    v_and_b32 v12, 1, v0
    v_lshl_add_u32 v12, v3, 1, v12
    v_mul_u32_u24 v12, 1280, v12
    v_bfe_u32 v3, v0, 1, 1
    v_lshl_add_u32 v12, v3, 4, v12
    v_lshrrev_b32 v3, 4, v0
    v_lshl_add_u32 v12, v3, 5, v12
    s_lshl_b32 s28, s2, 7
    buffer_load_dwordx4 v[12:15], v12, s[{SA}:{SA+3}], s28 offen
    s_lshl_b32 s28, s2, 10
    s_add_u32 s28, s28, {MEMB}
    s_add_u32 s29, s28, 10240
    s_waitcnt vmcnt(0)
    v_min_u32 v12, -2, v12
    v_min_u32 v13, -2, v13
    v_min_u32 v14, -2, v14
    v_min_u32 v15, -2, v15
    buffer_store_dwordx4 v[12:15], v2, s[{SWS}:{SWS+3}], s28 offen sc1
    buffer_store_dwordx4 v[12:15], v2, s[{SWS}:{SWS+3}], s29 offen sc1
    PRO_NOMEM:
    s_waitcnt vmcnt(0)
    s_barrier
    ''')
    stamp(A,30,2,[(sWV,0)])
    A(f'''s_getreg_b32 s28, hwreg(HW_REG_XCC_ID,0,4)
    s_min_u32 s28, s28, 8
    s_cmp_lg_u32 s{sWV}, 0
    s_cbranch_scc1 PRO_W
    s_mul_i32 s29, s28, 7
    s_lshl_b64 s[30:31], 1, s29
    v_mov_b32 v2, s30
    v_mov_b32 v3, s31
    v_mov_b32 v4, 0
    s_mov_b64 exec, 1
    buffer_atomic_add_x2 v[2:3], v4, s[{SC}:{SC+3}], 0 offen sc0
    s_mov_b64 exec, -1
    s_waitcnt vmcnt(0)
    v_readfirstlane_b32 s32, v2
    v_readfirstlane_b32 s33, v3
    s_lshr_b64 s[34:35], s[32:33], s29
    s_and_b32 s36, s34, 127
    s_add_u32 s32, s32, s30
    s_addc_u32 s33, s33, s31
    s_mov_b32 s37, 0''')
    for j in range(9): A(f's_lshr_b64 s[34:35], s[32:33], {7*j}\ns_and_b32 s34, s34, 127\ns_add_u32 s37, s37, s34')
    A(f'''s_cmp_lg_u32 s37, 256
    s_cbranch_scc1 PRO_P
    s_or_b32 s33, s33, 0x80000000
    v_mov_b32 v4, s32
    v_mov_b32 v5, s33
    v_mov_b32 v6, s32
    v_mov_b32 v7, s33
    v_lshlrev_b32 v2, 5, v0
    s_mov_b32 s29, {GO}
    buffer_store_dwordx4 v[4:7], v2, s[{SWS}:{SWS+3}], s29 offen sc1
    buffer_store_dwordx4 v[4:7], v2, s[{SWS}:{SWS+3}], s29 offen offset:16 sc1
    s_branch PRO_D
    PRO_P:
    s_lshl_b32 s29, s2, 3
    s_add_u32 s29, s29, {GO}
    s_mov_b32 s30, 0
    v_mov_b32 v2, 0
    PRO_L:
    buffer_load_dwordx2 v[4:5], v2, s[{SWS}:{SWS+3}], s29 offen sc1
    s_waitcnt vmcnt(0)
    v_readfirstlane_b32 s32, v4
    v_readfirstlane_b32 s33, v5
    s_cmp_lt_i32 s33, 0
    s_cbranch_scc1 PRO_D
    s_add_u32 s30, s30, 1
    s_cmp_lt_u32 s30, {SPIN}
    s_cbranch_scc1 PRO_L''')
    abort(A,1)
    A(f'''PRO_D:
    v_mov_b32 v4, s32
    v_mov_b32 v5, s33
    v_mov_b32 v6, s36
    v_mov_b32 v3, 0
    ds_write_b64 v3, v[4:5]
    ds_write_b32 v3, v6 offset:8
    s_waitcnt lgkmcnt(0)
    PRO_W:
    s_barrier
    v_mov_b32 v3, 0
    ds_read_b64 v[4:5], v3
    ds_read_b32 v6, v3 offset:8
    s_waitcnt lgkmcnt(0)
    v_readfirstlane_b32 s48, v4
    v_readfirstlane_b32 s49, v5
    v_readfirstlane_b32 s29, v6
    s_and_b32 s49, s49, 0x7fffffff''')
    for j in range(9): A(f's_lshr_b64 s[30:31], s[48:49], {7*j}\ns_and_b32 s{32+j}, s30, 127')
    for j in range(9,16): A(f's_mov_b32 s{32+j}, 0')
    A('s_barrier\ns_mov_b32 s30, -1\ns_mov_b32 s31, -1')
    for j in range(8):
        n=A.lab('R'); b=A.lab('R')
        A(f'''s_cmp_lt_u32 s{32+j}, 32
        s_cbranch_scc1 {n}
        s_cmp_eq_i32 s30, -1
        s_cbranch_scc0 {b}
        s_mov_b32 s30, {j}
        s_branch {n}
        {b}:
        s_cmp_eq_i32 s31, -1
        s_cbranch_scc0 {n}
        s_mov_b32 s31, {j}
        {n}:''')
    A(f'''s_mov_b32 s{sMODE}, 1
    s_cmp_eq_i32 s31, -1
    s_cbranch_scc0 PRO_F
    s_mov_b32 s{sMODE}, 0
    s_mov_b32 s30, -2
    s_mov_b32 s31, -2
    PRO_F:
    s_mov_b32 s48, 0''')
    for j in range(9):
        n=A.lab('R'); b=A.lab('R')
        A(f'''s_cmp_le_u32 s28, {j}
        s_cbranch_scc1 {n}
        s_add_u32 s48, s48, s{32+j}
        s_cmp_eq_u32 s30, {j}
        s_cbranch_scc1 {b}
        s_cmp_eq_u32 s31, {j}
        s_cbranch_scc0 {n}
        {b}:
        s_sub_u32 s48, s48, 32
        {n}:''')
    A(f'''s_add_u32 s48, s48, s29
    s_cmp_eq_u32 s{sMODE}, 0
    s_cbranch_scc1 PRO_SLOW
    s_mov_b32 s{sX}, 0
    s_cmp_eq_u32 s28, s30
    s_cbranch_scc1 PRO_CAND
    s_mov_b32 s{sX}, 1
    s_cmp_eq_u32 s28, s31
    s_cbranch_scc1 PRO_CAND
    s_mov_b32 s{sID}, s48
    s_branch WORKER
    PRO_CAND:
    s_mov_b32 s{sID}, s29
    s_cmp_lt_u32 s29, 32
    s_cbranch_scc1 REC
    s_sub_u32 s{sID}, s48, 32
    s_branch WORKER
    PRO_SLOW:
    s_lshr_b32 s{sX}, s48, 5
    s_and_b32 s{sID}, s48, 31
    s_cmp_lt_u32 s48, 64
    s_cbranch_scc1 REC
    s_sub_u32 s{sID}, s48, 64
    s_branch WORKER''')
def unpack(A,dst,src,n):
    for i in range(n):
        A(f'v_lshlrev_b32 v{dst+2*i}, 16, v{src+i}\nv_and_b32 v{dst+2*i+1}, 0xffff0000, v{src+i}')
def row_allreduce(A,r,op='v_add_f32'):
    for k in (8,4,2,1): A(f'{op}_dpp v{r}, v{r}, v{r} row_ror:{k} row_mask:0xf bank_mask:0xf')
def ln_stage(A):
    E=A.lab('LNE')
    srd(A,SA,0,2621440)
    A(f'''s_lshl_b32 s28, s{sID}, 2
    s_add_u32 s28, s28, s{sWV}
    s_cmp_ge_u32 s28, 512
    s_cbranch_scc1 {E}
    v_lshrrev_b32 v2, 4, v0
    v_mul_u32_u24 v2, 1280, v2
    v_and_b32 v3, 15, v0
    v_lshl_add_u32 v2, v3, 4, v2
    s_mul_i32 s29, s28, 5120
    s_add_u32 s30, s29, {XN}''')
    for p in range(5): A(f'buffer_load_dwordx4 v[{4+4*p}:{7+4*p}], v2, s[{SA}:{SA+3}], s29 offen offset:{256*p}')
    A('s_waitcnt vmcnt(0)')
    unpack(A,24,4,20)
    A('v_add_f32 v3, v24, v25')
    for i in range(26,64): A(f'v_add_f32 v3, v3, v{i}')
    row_allreduce(A,3)
    A('v_mul_f32 v3, 0x3acccccd, v3')
    for i in range(24,64): A(f'v_sub_f32 v{i}, v{i}, v3')
    A('v_mul_f32 v3, v24, v24')
    for i in range(25,64): A(f'v_fmac_f32 v3, v{i}, v{i}')
    row_allreduce(A,3)
    A('v_mov_b32 v64, 0x3727c5ac\nv_mov_b32 v65, 0x3acccccd\nv_fma_f32 v3, v3, v65, v64\nv_rsq_f32 v3, v3')
    for i in range(24,64): A(f'v_mul_f32 v{i}, v{i}, v3')
    for i in range(20): A(f'v_cvt_pk_bf16_f32 v{4+i}, v{24+2*i}, v{25+2*i}')
    for p in range(5): A(f'buffer_store_dwordx4 v[{4+4*p}:{7+4*p}], v2, s[{SWS}:{SWS+3}], s30 offen offset:{256*p} sc1')
    A(f'{E}:')
    stamp(A,23,2,[(sWV,0)])
    A(f's_lshl_b32 s31, s{sID}, 2')
    signal(A,'s31')
    l=A.lab('LW'); A(f's_cmp_lg_u32 s{sWV}, 0\ns_cbranch_scc1 {l}')
    poll_all(A,C_LN,192,2,vt=2)
    A(f'{l}:\ns_barrier')
    stamp(A,24,2,[(sWV,0)])
ACC=64; F=[128,144]; VDA=160; VDB=164; VA0=168; VB0=172; VA=173; VB=177
sTA=50; sTB=51; sLDA=52; sLDB=53; sN=54; sTYPE=55; sRB=56; sNB=57; sSTEP=58; sKB=59; sCNT=60; sR=61; sW3=62; sWM=63; sT0=64; sT1=65; sPA=66; sPB=67; sOB=68
def gemm_dma(A):
    A(f's_and_b32 s{sT0}, s{sKB}, 3\ns_lshl_b32 s{sT0}, s{sT0}, 15\ns_lshl_b32 s{sT1}, s{sWV}, 12\ns_add_u32 s{sT0}, s{sT0}, s{sT1}\ns_mov_b32 m0, s{sT0}')
    for i in range(4): A(f'buffer_load_dwordx4 v{VDA+i}, s[{SWS}:{SWS+3}], s{sPA} offen offset:{1024*i} sc1 lds')
    A(f's_add_u32 m0, s{sT0}, 16384')
    for i in range(4): A(f'buffer_load_dwordx4 v{VDB+i}, s[{SB}:{SB+3}], s{sPB} offen offset:{1024*i} lds')
    A(f's_add_u32 s{sPA}, s{sPA}, 128\ns_lshl_b32 s{sT1}, s{sLDB}, 6\ns_add_u32 s{sPB}, s{sPB}, s{sT1}\ns_add_u32 s{sKB}, s{sKB}, 1')
def frag_reads(A,f,kk):
    b=F[f]
    for i in range(2): A(f'ds_read_b128 v[{b+4*i}:{b+4*i+3}], v{VA+kk} offset:{4096*i}')
    for j in range(2):
        for t in range(2): A(f'ds_read_b64_tr_b16 v[{b+8+4*j+2*t}:{b+8+4*j+2*t+1}], v{VB} offset:{8192*j+2048*kk+512*t}')
def frag_mfma(A,f,swap,zero=False):
    b=F[f]
    for i in range(2):
        for j in range(2):
            d=ACC+32*i+16*j; fa=f'v[{b+4*i}:{b+4*i+3}]'; fb=f'v[{b+8+4*j}:{b+8+4*j+3}]'
            x,y=(fb,fa) if swap else (fa,fb)
            A(f'v_mfma_f32_32x32x16_bf16 v[{d}:{d+15}], {x}, {y}, '+('0' if zero else f'v[{d}:{d+15}]'))
def gemm_step(A,swap,first,vm,dma):
    A(f's_waitcnt vmcnt({vm})\ns_barrier')
    A(f's_and_b32 s{sT0}, s{sSTEP}, 3\ns_lshl_b32 s{sT0}, s{sT0}, 15')
    for kk in range(4): A(f'v_add_u32 v{VA+kk}, s{sT0}, v{VA0+kk}')
    A(f'v_add_u32 v{VB}, s{sT0}, v{VB0}')
    frag_reads(A,0,0)
    if dma: gemm_dma(A)
    if not first: frag_mfma(A,1,swap)
    frag_reads(A,1,1); A('s_waitcnt lgkmcnt(6)'); frag_mfma(A,0,swap,zero=first)
    frag_reads(A,0,2); A('s_waitcnt lgkmcnt(6)'); frag_mfma(A,1,swap)
    frag_reads(A,1,3); A('s_waitcnt lgkmcnt(6)'); frag_mfma(A,0,swap)
    A(f's_waitcnt lgkmcnt(0)\ns_add_u32 s{sSTEP}, s{sSTEP}, 1')
def gemm_body(A,swap,name):
    gemm_step(A,swap,True,16,True)
    L=A.lab('GL')
    A(f'{L}:')
    gemm_step(A,swap,False,16,True)
    A(f's_cmp_lt_u32 s{sKB}, s{sN}\ns_cbranch_scc1 {L}')
    gemm_step(A,swap,False,16,False)
    gemm_step(A,swap,False,8,False)
    gemm_step(A,swap,False,0,False)
    frag_mfma(A,1,swap)
def silu(A,x,t):
    A(f'v_mul_f32 v{t}, 0xbfb8aa3b, v{x}\nv_exp_f32 v{t}, v{t}\nv_add_f32 v{t}, 1.0, v{t}\nv_rcp_f32 v{t}, v{t}\nv_mul_f32 v{x}, v{x}, v{t}')
def pack_swap(A,d,o):
    for q in range(4):
        A(f'v_cvt_pk_bf16_f32 v{o+2*q}, v{d+4*q}, v{d+4*q+1}\nv_cvt_pk_bf16_f32 v{o+2*q+1}, v{d+4*q+2}, v{d+4*q+3}')
    for qq in range(2):
        A(f'v_permlane32_swap_b32 v{o+4*qq}, v{o+4*qq+2}\nv_permlane32_swap_b32 v{o+4*qq+1}, v{o+4*qq+3}')
def worker_batch(A):
    A(f'''s_mul_i32 s{sW3}, s{sID}, 21846
    s_lshr_b32 s{sW3}, s{sW3}, 16
    s_mul_i32 s28, s{sW3}, 3
    s_sub_u32 s{sWM}, s{sID}, s28
    s_mov_b32 s{sR}, 0''')
    A(f'''s_lshr_b32 s28, s{sWV}, 1
    s_and_b32 s29, s{sWV}, 1
    v_and_b32 v2, 31, v0
    v_lshrrev_b32 v3, 5, v0
    v_bfe_u32 v4, v0, 1, 3
    s_lshl_b32 s30, s28, 13
    v_lshl_add_u32 v5, v2, 7, s30''')
    for kk in range(4):
        A(f'v_add_u32 v6, {2*kk}, v3\nv_xor_b32 v6, v6, v4\nv_lshl_add_u32 v{VA0+kk}, v6, 4, v5')
    A(f'''v_lshrrev_b32 v2, 5, v0
    v_bfe_u32 v3, v0, 2, 2
    v_lshl_add_u32 v2, v2, 3, v3
    v_lshlrev_b32 v2, 7, v2
    v_bfe_u32 v3, v0, 3, 1
    v_xor_b32 v3, s29, v3
    v_lshl_add_u32 v2, v3, 6, v2
    v_bfe_u32 v3, v0, 4, 1
    v_lshl_add_u32 v2, v3, 5, v2
    v_and_b32 v3, 3, v0
    v_lshl_add_u32 v2, v3, 3, v2
    v_add_u32 v{VB0}, 16384, v2''')
    A('WTASK:')
    A(f'''s_mul_i32 s28, s{sR}, 192
    s_add_u32 s28, s28, s{sID}
    s_cmp_ge_u32 s28, 2048
    s_cbranch_scc1 WBATCH_END
    s_cmp_ge_u32 s28, 960
    s_cbranch_scc1 WD1
    s_mul_i32 s{sRB}, s{sR}, 3
    s_add_u32 s{sRB}, s{sRB}, s{sWM}
    s_mov_b32 s{sNB}, s{sW3}
    s_branch WD_KV
    WD1:
    s_sub_u32 s28, s28, 960
    s_cmp_ge_u32 s28, 64
    s_cbranch_scc1 WD2
    s_mov_b32 s{sRB}, 15
    s_mov_b32 s{sNB}, s28
    WD_KV:
    s_mov_b32 s{sTYPE}, 0
    s_cmp_lt_u32 s{sNB}, 32
    s_cbranch_scc1 WD_K
    s_sub_u32 s{sNB}, s{sNB}, 32
    s_mov_b32 s{sTYPE}, 1''')
    srd(A,SB,32,5242880)
    A(f's_mov_b32 s{sOB}, {VF}\ns_branch WD_QKV\nWD_K:')
    srd(A,SB,24,5242880)
    A(f'''s_mov_b32 s{sOB}, {KF}
    s_branch WD_QKV
    WD2:
    s_sub_u32 s28, s28, 64
    s_cmp_ge_u32 s28, 432
    s_cbranch_scc1 WD3
    s_mul_i32 s29, s28, 607
    s_lshr_b32 s29, s29, 16
    s_mul_i32 s30, s29, 108
    s_sub_u32 s30, s28, s30
    s_and_b32 s31, s30, 3
    s_lshl_b32 s29, s29, 2
    s_add_u32 s{sRB}, s29, s31
    s_lshr_b32 s{sNB}, s30, 2
    s_mov_b32 s{sTYPE}, 3
    s_cmp_lt_u32 s{sWV}, 2
    s_cbranch_scc1 WD_G''')
    srd(A,SB,72,2211840); A('s_branch WD_G2\nWD_G:'); srd(A,SB,64,2211840)
    A(f'''WD_G2:
    s_mov_b32 s{sLDA}, 1280
    s_mov_b32 s{sLDB}, 3456
    s_mov_b32 s{sN}, 10
    s_lshl_b32 s{sTB}, s{sNB}, 7
    s_mul_i32 s{sTA}, s{sRB}, {128*1280}
    s_add_u32 s{sTA}, s{sTA}, {XN}
    s_branch WD_DONE
    WD3:
    s_sub_u32 s28, s28, 432
    s_cmp_ge_u32 s28, 512
    s_cbranch_scc1 WD4
    s_lshr_b32 s29, s28, 7
    s_lshl_b32 s29, s29, 2
    s_and_b32 s30, s28, 3
    s_add_u32 s{sRB}, s29, s30
    s_bfe_u32 s{sNB}, s28, 0x50002
    s_mov_b32 s{sTYPE}, 2''')
    srd(A,SB,16,5242880)
    A(f'''s_mov_b32 s{sOB}, {QF}
    WD_QKV:
    s_mov_b32 s{sLDA}, 1280
    s_mov_b32 s{sLDB}, 8192
    s_mov_b32 s{sN}, 10
    s_lshl_b32 s{sTB}, s{sNB}, 8
    s_lshr_b32 s29, s{sWV}, 1
    s_lshl_b32 s29, s29, 7
    s_add_u32 s{sTB}, s{sTB}, s29
    s_mul_i32 s{sTA}, s{sRB}, {128*1280}
    s_add_u32 s{sTA}, s{sTA}, {XN}
    s_branch WD_DONE
    WD4:
    s_sub_u32 s28, s28, 512
    s_mul_i32 s{sRB}, s28, 13108
    s_lshr_b32 s{sRB}, s{sRB}, 16
    s_mul_i32 s29, s{sRB}, 5
    s_sub_u32 s{sNB}, s28, s29
    s_mov_b32 s{sTYPE}, 4''')
    srd(A,SB,80,2211840)
    A(f'''s_mov_b32 s{sLDA}, 3456
    s_mov_b32 s{sLDB}, 1280
    s_mov_b32 s{sN}, 27
    s_lshl_b32 s{sTB}, s{sNB}, 8
    s_lshr_b32 s29, s{sWV}, 1
    s_lshl_b32 s29, s29, 7
    s_add_u32 s{sTB}, s{sTB}, s29
    s_mul_i32 s{sTA}, s{sRB}, {128*3456}
    s_add_u32 s{sTA}, s{sTA}, {HB}
    s_lshl_b32 s30, s{sRB}, 7
    s_add_u32 s30, s30, {C_H0}''')
    poll_all(A,'s30',27,3)
    A('WD_DONE:')
    A(f'''v_lshrrev_b32 v2, 3, v0
    s_lshl_b32 s28, s{sWV}, 5
    v_add_u32 v3, s28, v2
    v_and_b32 v4, 7, v0
    v_lshrrev_b32 v5, 4, v0''')
    for i in range(4):
        A(f'''v_add_u32 v6, {8*i}, v3
        v_mul_lo_u32 v6, v6, s{sLDA}
        v_add_u32 v7, {(4*i)&7}, v5
        v_xor_b32 v7, v7, v4
        v_lshl_add_u32 v6, v7, 4, v6
        v_subrev_u32 v{VDA+i}, {1024*i}, v6''')
    A(f'''s_and_b32 s28, s{sWV}, 1
    s_lshl_b32 s28, s28, 5
    v_add_u32 v3, s28, v2
    v_and_b32 v5, 1, v5
    v_lshlrev_b32 v5, 2, v5
    v_xor_b32 v7, v5, v4''')
    for i in range(4):
        A(f'''v_add_u32 v6, {8*i}, v3
        v_mul_lo_u32 v6, v6, s{sLDB}
        v_lshl_add_u32 v6, v7, 4, v6
        v_subrev_u32 v{VDB+i}, {1024*i}, v6''')
    A(f's_mov_b32 s{sPA}, s{sTA}\ns_mov_b32 s{sPB}, s{sTB}\ns_mov_b32 s{sKB}, 0\ns_mov_b32 s{sSTEP}, 0')
    for i in range(3): gemm_dma(A)
    A(f's_cmp_eq_u32 s{sTYPE}, 1\ns_cbranch_scc1 WG_NS')
    gemm_body(A,True,'S')
    A(f's_cmp_eq_u32 s{sTYPE}, 3\ns_cbranch_scc1 WE_F1\ns_cmp_eq_u32 s{sTYPE}, 4\ns_cbranch_scc1 WE_F2')
    def kv_addr():
        A(f'''v_bfe_u32 v2, v0, 4, 1
        v_lshlrev_b32 v2, 10, v2
        v_lshrrev_b32 v3, 5, v0
        v_lshl_add_u32 v2, v3, 8, v2
        v_and_b32 v3, 15, v0
        v_lshl_add_u32 v2, v3, 4, v2
        s_and_b32 s28, s{sWV}, 1
        s_lshl_b32 s28, s28, 11
        v_add_u32 v2, s28, v2
        s_lshl_b32 s28, s{sRB}, 2
        s_and_b32 s29, s{sWV}, 2
        s_add_u32 s28, s28, s29
        s_lshl_b32 s28, s28, 5
        s_add_u32 s28, s28, s{sNB}
        s_lshl_b32 s28, s28, 13
        s_add_u32 s28, s28, s{sOB}''')
    kv_addr()
    for i in range(2):
        for j in range(2):
            o=8+16*i+8*j
            pack_swap(A,ACC+32*i+16*j,o)
            A(f's_add_u32 s29, s28, {i*262144+j*4096}')
            for q in range(2): A(f'buffer_store_dwordx4 v[{o+4*q}:{o+4*q+3}], v2, s[{SWS}:{SWS+3}], s29 offen offset:{512*q} sc1')
    A(f's_cmp_eq_u32 s{sTYPE}, 0\ns_mov_b32 s30, {C_Q0}\ns_cselect_b32 s30, {C_KV0}, s30\ns_branch WE_SIG')
    A('WG_NS:')
    gemm_body(A,False,'N')
    kv_addr()
    for i in range(2):
        for j in range(2):
            o=8+16*i+8*j; d=ACC+32*i+16*j
            for pc,(qa,qb) in enumerate(((0,2),(1,3))):
                for k,q in enumerate((qa,qb)):
                    A(f'v_cvt_pk_bf16_f32 v{o+4*pc+2*k}, v{d+4*q}, v{d+4*q+1}\nv_cvt_pk_bf16_f32 v{o+4*pc+2*k+1}, v{d+4*q+2}, v{d+4*q+3}')
            A(f's_add_u32 s29, s28, {i*262144+j*4096}')
            for q in range(2): A(f'buffer_store_dwordx4 v[{o+4*q}:{o+4*q+3}], v2, s[{SWS}:{SWS+3}], s29 offen offset:{512*q} sc1')
    A(f's_mov_b32 s30, {C_KV0}\ns_branch WE_SIG')
    def rm_addr(ld):
        A(f'''v_and_b32 v2, 31, v0
        s_lshr_b32 s28, s{sWV}, 1
        s_lshl_b32 s28, s28, 6
        v_add_u32 v2, s28, v2
        v_mul_u32_u24 v2, {ld}, v2
        v_lshrrev_b32 v3, 5, v0
        v_lshl_add_u32 v2, v3, 4, v2
        s_and_b32 s28, s{sWV}, 1
        s_lshl_b32 s28, s28, 6
        v_add_u32 v2, s28, v2''')
    A('WE_F1:')
    rm_addr(3456)
    A(f's_mul_i32 s28, s{sRB}, {128*3456}\ns_lshl_b32 s29, s{sNB}, 7\ns_add_u32 s28, s28, s29\ns_add_u32 s28, s28, {HB}')
    for i in range(2):
        d=ACC+32*i
        for r in range(16):
            silu(A,d+r,4+(r&3)); A(f'v_mul_f32 v{d+r}, v{d+r}, v{d+16+r}')
        o=8+8*i
        pack_swap(A,d,o)
        A(f's_add_u32 s29, s28, {i*32*3456}')
        for q in range(2): A(f'buffer_store_dwordx4 v[{o+4*q}:{o+4*q+3}], v2, s[{SWS}:{SWS+3}], s29 offen offset:{32*q} sc1')
    A(f's_mov_b32 s30, {C_H0}\ns_branch WE_SIG')
    A('WE_F2:')
    rm_addr(1280)
    A(f's_mul_i32 s28, s{sRB}, {128*1280}\ns_lshl_b32 s29, s{sNB}, 8\ns_add_u32 s28, s28, s29\ns_add_u32 s28, s28, {GB}')
    for i in range(2):
        for j in range(2):
            d=ACC+32*i+16*j; o=8+16*i+8*j
            for r in range(16): silu(A,d+r,4+(r&3))
            pack_swap(A,d,o)
            A(f's_add_u32 s29, s28, {i*32*1280+j*128}')
            for q in range(2): A(f'buffer_store_dwordx4 v[{o+4*q}:{o+4*q+3}], v2, s[{SWS}:{SWS+3}], s29 offen offset:{32*q} sc1')
    A(f's_mov_b32 s30, {C_G0}')
    A(f'WE_SIG:\ns_cmp_lt_u32 s{sTYPE}, 2\ns_cselect_b32 s29, 8, 7\ns_lshl_b32 s29, s{sRB}, s29\ns_add_u32 s30, s30, s29\ns_cmp_eq_u32 s{sTYPE}, 1\ns_cselect_b32 s29, 32, 0\ns_add_u32 s29, s29, s{sNB}\ns_lshl_b32 s29, s29, 2\ns_add_u32 s30, s30, s29')
    signal(A,'s30')
    A(f's_add_u32 s{sR}, s{sR}, 1\ns_branch WTASK\nWBATCH_END:')
    stamp(A,25,2,[(sWV,0)])
```

```python
from asmlib import *
KN='recurrent_scan__memory_aug_recurrent_mem_tr__swiglu_ffn__prompt'
C_LN=0
C_KV0=0x400; C_Q0=0x1400; C_H0=0x1c00; C_G0=0x2400; C_O0=0x2c00
STAMP=0x31000; GO=0x32000
F_M=0x8000
MEMB=0x20000; PBUF=0x40000; XN=0x100000; KF=0x400000; VF=0x1400000; QF=0x2400000
HB=0x3400000; GB=0x3B00000; KM=0x3E00000; VM=0x4600000; OF=0x4A00000
SPIN=1<<17
SWS=4; SA=8; SB=12; SC=16; SD=20
sWV=24; sID=25; sX=26; sMODE=27
def srd(A,base,arg,nbytes):
    A(f's_load_dwordx2 s[{base}:{base+1}], s[0:1], {arg}\ns_waitcnt lgkmcnt(0)\ns_mov_b32 s{base+2}, {nbytes}\ns_mov_b32 s{base+3}, 0x20000')
def abort(A,code):
    A(f'v_mov_b32 v2, {code}\nv_mov_b32 v3, {STAMP+160}\nbuffer_store_dword v2, v3, s[{SWS}:{SWS+3}], 0 offen sc1\ns_waitcnt vmcnt(0)\ns_endpgm')
def poll_ge(A,soff,target,code,vt=2,st=28):
    L=A.lab('PL'); D=A.lab('PD')
    if isinstance(soff,int): A(f'v_mov_b32 v{vt+1}, {soff}\ns_mov_b32 s{st}, 0'); soff=0
    else: A(f'v_mov_b32 v{vt+1}, 0\ns_mov_b32 s{st}, 0')
    A(f'{L}:')
    A(f'buffer_load_dword v{vt}, v{vt+1}, s[{SWS}:{SWS+3}], {soff} offen sc1\ns_waitcnt vmcnt(0)\nv_readfirstlane_b32 s{st+1}, v{vt}')
    A(f's_cmp_ge_u32 s{st+1}, {target}\ns_cbranch_scc1 {D}\ns_add_u32 s{st}, s{st}, 1\ns_cmp_lt_u32 s{st}, {SPIN}\ns_cbranch_scc1 {L}')
    abort(A,code)
    A(f'{D}:')
def poll_all(A,soff,n,code,vt=2,st=28):
    L=A.lab('PL'); D=A.lab('PD')
    A(f'v_mbcnt_lo_u32_b32 v{vt+1}, -1, 0\nv_mbcnt_hi_u32_b32 v{vt+1}, -1, v{vt+1}')
    if n==192: A(f'v_min_u32 v{vt+1}, 47, v{vt+1}\nv_lshlrev_b32 v{vt+1}, 4, v{vt+1}')
    else:
        if n<64: A(f'v_min_u32 v{vt+1}, {n-1}, v{vt+1}')
        A(f'v_lshlrev_b32 v{vt+1}, 2, v{vt+1}')
    if isinstance(soff,int):
        if soff: A(f'v_add_u32 v{vt+1}, {soff}, v{vt+1}')
        soff=0
    A(f's_mov_b32 s{st}, 0\n{L}:')
    if n==192:
        A(f'buffer_load_dwordx4 v[{vt+2}:{vt+5}], v{vt+1}, s[{SWS}:{SWS+3}], {soff} offen sc1\ns_waitcnt vmcnt(0)\nv_min_u32 v{vt}, v{vt+2}, v{vt+3}\nv_min3_u32 v{vt}, v{vt}, v{vt+4}, v{vt+5}')
    else:
        A(f'buffer_load_dword v{vt}, v{vt+1}, s[{SWS}:{SWS+3}], {soff} offen sc1\ns_waitcnt vmcnt(0)')
    A(f'v_cmp_eq_u32 vcc, 0, v{vt}\ns_cbranch_vccz {D}\ns_add_u32 s{st}, s{st}, 1\ns_cmp_lt_u32 s{st}, {SPIN}\ns_cbranch_scc1 {L}')
    abort(A,code)
    A(f'{D}:')
def signal(A,soff,vt=2):
    L=A.lab('SG')
    A(f's_waitcnt vmcnt(0)\ns_barrier\ns_cmp_lg_u32 s{sWV}, 0\ns_cbranch_scc1 {L}')
    if isinstance(soff,int): A(f'v_mov_b32 v{vt+1}, {soff}'); soff=0
    else: A(f'v_mov_b32 v{vt+1}, 0')
    A(f'v_mov_b32 v{vt}, 1\ns_mov_b64 exec, 1\nbuffer_store_dword v{vt}, v{vt+1}, s[{SWS}:{SWS+3}], {soff} offen sc1\ns_mov_b64 exec, -1')
    A(f'{L}:')
TR=False; TRD=False
DMAP={16:2,17:3,18:4,19:5,20:6,21:7,22:8,24:9,25:10,26:11,27:12,28:13,29:14,30:15}
def stamp(A,slot,vt=2,cond=None):
    if not TR: return
    if TRD and slot not in DMAP: return
    L=A.lab('ST')
    for r,val in (cond or []): A(f's_cmp_lg_u32 s{r}, {val}\ns_cbranch_scc1 {L}')
    A(f's_load_dwordx2 s[92:93], s[0:1], {96 if TRD else 104}\ns_memrealtime s[90:91]\ns_waitcnt lgkmcnt(0)\ns_mov_b32 s94, {256 if TRD else 0x100000}\ns_mov_b32 s95, 0x20000')
    A(f'v_mov_b32 v{vt}, s90\nv_mov_b32 v{vt+1}, {4*DMAP[slot] if TRD else STAMP+4*slot}\ns_mov_b64 s[96:97], exec\ns_mov_b64 exec, 1\nbuffer_atomic_umax v{vt}, v{vt+1}, s[92:95], 0 offen\ns_mov_b64 exec, s[96:97]\n{L}:')
def prologue(A,opts=()):
    A(f'''s_cmp_ge_u32 s2, 256
    s_cbranch_scc1 KEND
    v_lshrrev_b32 v1, 6, v0
    s_nop 0
    v_readfirstlane_b32 s{sWV}, v1''')
    stamp(A,16,2,[(2,0),(sWV,0)])
    srd(A,SWS,104,0x10000000)
    srd(A,SC,96,256)
    srd(A,SA,8,10240)
    A(f'''v_mov_b32 v4, -1
    v_mov_b32 v5, -1
    v_mov_b32 v6, -1
    v_mov_b32 v7, -1
    v_mov_b32 v8, 0
    v_mov_b32 v9, 0
    v_mov_b32 v10, 0
    v_mov_b32 v11, 0
    v_lshlrev_b32 v2, 4, v0
    s_mul_i32 s28, s2, 2560
    s_add_u32 s28, s28, {PBUF}
    s_mul_i32 s29, s2, 384
    s_mul_i32 s30, s2, 160
    s_add_u32 s30, s30, {MEMB+20480}
    v_cmp_gt_u32 vcc, 160, v0
    s_and_saveexec_b64 s[32:33], vcc
    buffer_store_dwordx4 v[4:7], v2, s[{SWS}:{SWS+3}], s28 offen sc1
    v_cmp_gt_u32 vcc, 24, v0
    s_and_b64 exec, exec, vcc
    buffer_store_dwordx4 v[8:11], v2, s[{SWS}:{SWS+3}], s29 offen sc1
    v_cmp_gt_u32 vcc, 10, v0
    s_and_b64 exec, exec, vcc
    buffer_store_dwordx4 v[4:7], v2, s[{SWS}:{SWS+3}], s30 offen sc1
    s_mov_b64 exec, 1
    s_lshl_b32 s31, s2, 3
    s_add_u32 s31, s31, {GO}
    s_cmp_lg_u32 s{sWV}, 0
    s_cbranch_scc1 PRO_NG
    buffer_store_dwordx2 v[8:9], v2, s[{SWS}:{SWS+3}], s31 offen sc1
    PRO_NG:
    s_mov_b64 exec, s[32:33]
    s_cmp_ge_u32 s2, 10
    s_cbranch_scc1 PRO_NOMEM
    s_cmp_lg_u32 s{sWV}, 0
    s_cbranch_scc1 PRO_NOMEM
    v_bfe_u32 v3, v0, 2, 2
    v_and_b32 v12, 1, v0
    v_lshl_add_u32 v12, v3, 1, v12
    v_mul_u32_u24 v12, 1280, v12
    v_bfe_u32 v3, v0, 1, 1
    v_lshl_add_u32 v12, v3, 4, v12
    v_lshrrev_b32 v3, 4, v0
    v_lshl_add_u32 v12, v3, 5, v12
    s_lshl_b32 s28, s2, 7
    buffer_load_dwordx4 v[12:15], v12, s[{SA}:{SA+3}], s28 offen
    s_lshl_b32 s28, s2, 10
    s_add_u32 s28, s28, {MEMB}
    s_add_u32 s29, s28, 10240
    s_waitcnt vmcnt(0)
    v_min_u32 v12, -2, v12
    v_min_u32 v13, -2, v13
    v_min_u32 v14, -2, v14
    v_min_u32 v15, -2, v15
    buffer_store_dwordx4 v[12:15], v2, s[{SWS}:{SWS+3}], s28 offen sc1
    buffer_store_dwordx4 v[12:15], v2, s[{SWS}:{SWS+3}], s29 offen sc1
    PRO_NOMEM:
    s_waitcnt vmcnt(0)
    s_barrier
    ''')
    stamp(A,30,2,[(sWV,0)])
    A(f'''s_getreg_b32 s28, hwreg(HW_REG_XCC_ID,0,4)
    s_min_u32 s28, s28, 8
    s_cmp_lg_u32 s{sWV}, 0
    s_cbranch_scc1 PRO_W
    s_mul_i32 s29, s28, 7
    s_lshl_b64 s[30:31], 1, s29
    v_mov_b32 v2, s30
    v_mov_b32 v3, s31
    v_mov_b32 v4, 0
    s_mov_b64 exec, 1
    buffer_atomic_add_x2 v[2:3], v4, s[{SC}:{SC+3}], 0 offen sc0
    s_mov_b64 exec, -1
    s_waitcnt vmcnt(0)
    v_readfirstlane_b32 s32, v2
    v_readfirstlane_b32 s33, v3
    s_lshr_b64 s[34:35], s[32:33], s29
    s_and_b32 s36, s34, 127
    s_add_u32 s32, s32, s30
    s_addc_u32 s33, s33, s31
    s_mov_b32 s37, 0''')
    for j in range(9): A(f's_lshr_b64 s[34:35], s[32:33], {7*j}\ns_and_b32 s34, s34, 127\ns_add_u32 s37, s37, s34')
    A(f'''s_cmp_lg_u32 s37, 256
    s_cbranch_scc1 PRO_P
    s_or_b32 s33, s33, 0x80000000
    v_mov_b32 v4, s32
    v_mov_b32 v5, s33
    v_mov_b32 v6, s32
    v_mov_b32 v7, s33
    v_lshlrev_b32 v2, 5, v0
    s_mov_b32 s29, {GO}
    buffer_store_dwordx4 v[4:7], v2, s[{SWS}:{SWS+3}], s29 offen sc1
    buffer_store_dwordx4 v[4:7], v2, s[{SWS}:{SWS+3}], s29 offen offset:16 sc1
    v_mov_b32 v4, 0
    v_mov_b32 v5, 0
    v_mov_b32 v2, 0
    s_mov_b64 exec, 1
    buffer_store_dwordx2 v[4:5], v2, s[{SC}:{SC+3}], 0 offen sc1
    s_mov_b64 exec, -1
    s_branch PRO_D
    PRO_P:
    s_lshl_b32 s29, s2, 3
    s_add_u32 s29, s29, {GO}
    s_mov_b32 s30, 0
    v_mov_b32 v2, 0
    PRO_L:
    buffer_load_dwordx2 v[4:5], v2, s[{SWS}:{SWS+3}], s29 offen sc1
    s_waitcnt vmcnt(0)
    v_readfirstlane_b32 s32, v4
    v_readfirstlane_b32 s33, v5
    s_cmp_lt_i32 s33, 0
    s_cbranch_scc1 PRO_D
    s_add_u32 s30, s30, 1
    s_cmp_lt_u32 s30, {SPIN}
    s_cbranch_scc1 PRO_L''')
    abort(A,1)
    A(f'''PRO_D:
    v_mov_b32 v4, s32
    v_mov_b32 v5, s33
    v_mov_b32 v6, s36
    v_mov_b32 v3, 0
    ds_write_b64 v3, v[4:5]
    ds_write_b32 v3, v6 offset:8
    s_waitcnt lgkmcnt(0)
    PRO_W:
    s_barrier
    v_mov_b32 v3, 0
    ds_read_b64 v[4:5], v3
    ds_read_b32 v6, v3 offset:8
    s_waitcnt lgkmcnt(0)
    v_readfirstlane_b32 s48, v4
    v_readfirstlane_b32 s49, v5
    v_readfirstlane_b32 s29, v6
    s_and_b32 s49, s49, 0x7fffffff''')
    for j in range(9): A(f's_lshr_b64 s[30:31], s[48:49], {7*j}\ns_and_b32 s{32+j}, s30, 127')
    for j in range(9,16): A(f's_mov_b32 s{32+j}, 0')
    A('s_barrier\ns_mov_b32 s30, -1\ns_mov_b32 s31, -1')
    for j in range(8):
        n=A.lab('R'); b=A.lab('R')
        A(f'''s_cmp_lt_u32 s{32+j}, 32
        s_cbranch_scc1 {n}
        s_cmp_eq_i32 s30, -1
        s_cbranch_scc0 {b}
        s_mov_b32 s30, {j}
        s_branch {n}
        {b}:
        s_cmp_eq_i32 s31, -1
        s_cbranch_scc0 {n}
        s_mov_b32 s31, {j}
        {n}:''')
    A(f'''s_mov_b32 s{sMODE}, 1
    s_cmp_eq_i32 s31, -1
    s_cbranch_scc0 PRO_F
    s_mov_b32 s{sMODE}, 0
    s_mov_b32 s30, -2
    s_mov_b32 s31, -2
    PRO_F:
    s_mov_b32 s48, 0''')
    for j in range(9):
        n=A.lab('R'); b=A.lab('R')
        A(f'''s_cmp_le_u32 s28, {j}
        s_cbranch_scc1 {n}
        s_add_u32 s48, s48, s{32+j}
        s_cmp_eq_u32 s30, {j}
        s_cbranch_scc1 {b}
        s_cmp_eq_u32 s31, {j}
        s_cbranch_scc0 {n}
        {b}:
        s_sub_u32 s48, s48, 32
        {n}:''')
    A(f'''s_add_u32 s48, s48, s29
    s_cmp_eq_u32 s{sMODE}, 0
    s_cbranch_scc1 PRO_SLOW
    s_mov_b32 s{sX}, 0
    s_cmp_eq_u32 s28, s30
    s_cbranch_scc1 PRO_CAND
    s_mov_b32 s{sX}, 1
    s_cmp_eq_u32 s28, s31
    s_cbranch_scc1 PRO_CAND
    s_mov_b32 s{sID}, s48
    s_branch WORKER
    PRO_CAND:
    s_mov_b32 s{sID}, s29
    s_cmp_lt_u32 s29, 32
    s_cbranch_scc1 REC
    s_sub_u32 s{sID}, s48, 32
    s_branch WORKER
    PRO_SLOW:
    s_lshr_b32 s{sX}, s48, 5
    s_and_b32 s{sID}, s48, 31
    s_cmp_lt_u32 s48, 64
    s_cbranch_scc1 REC
    s_sub_u32 s{sID}, s48, 64
    s_branch WORKER''')
def unpack(A,dst,src,n):
    for i in range(n):
        A(f'v_lshlrev_b32 v{dst+2*i}, 16, v{src+i}\nv_and_b32 v{dst+2*i+1}, 0xffff0000, v{src+i}')
def row_allreduce(A,r,op='v_add_f32'):
    for k in (8,4,2,1): A(f'{op}_dpp v{r}, v{r}, v{r} row_ror:{k} row_mask:0xf bank_mask:0xf')
def ln_stage(A):
    E=A.lab('LNE')
    srd(A,SA,0,2621440)
    A(f'''s_lshl_b32 s28, s{sID}, 2
    s_add_u32 s28, s28, s{sWV}
    s_cmp_ge_u32 s28, 512
    s_cbranch_scc1 {E}
    v_lshrrev_b32 v2, 4, v0
    v_mul_u32_u24 v2, 1280, v2
    v_and_b32 v3, 15, v0
    v_lshl_add_u32 v2, v3, 4, v2
    s_mul_i32 s29, s28, 5120
    s_add_u32 s30, s29, {XN}''')
    for p in range(5): A(f'buffer_load_dwordx4 v[{4+4*p}:{7+4*p}], v2, s[{SA}:{SA+3}], s29 offen offset:{256*p}')
    A('s_waitcnt vmcnt(0)')
    unpack(A,24,4,20)
    A('v_add_f32 v3, v24, v25')
    for i in range(26,64): A(f'v_add_f32 v3, v3, v{i}')
    row_allreduce(A,3)
    A('v_mul_f32 v3, 0x3acccccd, v3')
    for i in range(24,64): A(f'v_sub_f32 v{i}, v{i}, v3')
    A('v_mul_f32 v3, v24, v24')
    for i in range(25,64): A(f'v_fmac_f32 v3, v{i}, v{i}')
    row_allreduce(A,3)
    A('v_mov_b32 v64, 0x3727c5ac\nv_mov_b32 v65, 0x3acccccd\nv_fma_f32 v3, v3, v65, v64\nv_rsq_f32 v3, v3')
    for i in range(24,64): A(f'v_mul_f32 v{i}, v{i}, v3')
    for i in range(20): A(f'v_cvt_pk_bf16_f32 v{4+i}, v{24+2*i}, v{25+2*i}')
    for p in range(5): A(f'buffer_store_dwordx4 v[{4+4*p}:{7+4*p}], v2, s[{SWS}:{SWS+3}], s30 offen offset:{256*p} sc1')
    A(f'{E}:')
    stamp(A,23,2,[(sWV,0)])
    A(f's_lshl_b32 s31, s{sID}, 2')
    signal(A,'s31')
    l=A.lab('LW'); A(f's_cmp_lg_u32 s{sWV}, 0\ns_cbranch_scc1 {l}')
    poll_all(A,C_LN,192,2,vt=2)
    A(f'{l}:\ns_barrier')
    stamp(A,24,2,[(sWV,0)])
ACC=64; F=[128,144]; VDA=160; VDB=164; VA0=168; VB0=172; VA=173; VB=177
sTA=50; sTB=51; sLDA=52; sLDB=53; sN=54; sTYPE=55; sRB=56; sNB=57; sSTEP=58; sKB=59; sCNT=60; sR=61; sW3=62; sWM=63; sT0=64; sT1=65; sPA=66; sPB=67; sOB=68
def gemm_dma(A):
    A(f's_and_b32 s{sT0}, s{sKB}, 3\ns_lshl_b32 s{sT0}, s{sT0}, 15\ns_lshl_b32 s{sT1}, s{sWV}, 12\ns_add_u32 s{sT0}, s{sT0}, s{sT1}\ns_mov_b32 m0, s{sT0}')
    for i in range(4): A(f'buffer_load_dwordx4 v{VDA+i}, s[{SWS}:{SWS+3}], s{sPA} offen offset:{1024*i} sc1 lds')
    A(f's_add_u32 m0, s{sT0}, 16384')
    for i in range(4): A(f'buffer_load_dwordx4 v{VDB+i}, s[{SB}:{SB+3}], s{sPB} offen offset:{1024*i} lds')
    A(f's_add_u32 s{sPA}, s{sPA}, 128\ns_lshl_b32 s{sT1}, s{sLDB}, 6\ns_add_u32 s{sPB}, s{sPB}, s{sT1}\ns_add_u32 s{sKB}, s{sKB}, 1')
def frag_reads(A,f,kk):
    b=F[f]
    for i in range(2): A(f'ds_read_b128 v[{b+4*i}:{b+4*i+3}], v{VA+kk} offset:{4096*i}')
    for j in range(2):
        for t in range(2): A(f'ds_read_b64_tr_b16 v[{b+8+4*j+2*t}:{b+8+4*j+2*t+1}], v{VB} offset:{8192*j+2048*kk+512*t}')
def frag_mfma(A,f,swap,zero=False):
    b=F[f]
    for i in range(2):
        for j in range(2):
            d=ACC+32*i+16*j; fa=f'v[{b+4*i}:{b+4*i+3}]'; fb=f'v[{b+8+4*j}:{b+8+4*j+3}]'
            x,y=(fb,fa) if swap else (fa,fb)
            A(f'v_mfma_f32_32x32x16_bf16 v[{d}:{d+15}], {x}, {y}, '+('0' if zero else f'v[{d}:{d+15}]'))
def gemm_step(A,swap,first,vm,dma):
    A(f's_waitcnt vmcnt({vm})\ns_barrier')
    A(f's_and_b32 s{sT0}, s{sSTEP}, 3\ns_lshl_b32 s{sT0}, s{sT0}, 15')
    for kk in range(4): A(f'v_add_u32 v{VA+kk}, s{sT0}, v{VA0+kk}')
    A(f'v_add_u32 v{VB}, s{sT0}, v{VB0}')
    frag_reads(A,0,0)
    if dma: gemm_dma(A)
    if not first: frag_mfma(A,1,swap)
    frag_reads(A,1,1); A('s_waitcnt lgkmcnt(6)'); frag_mfma(A,0,swap,zero=first)
    frag_reads(A,0,2); A('s_waitcnt lgkmcnt(6)'); frag_mfma(A,1,swap)
    frag_reads(A,1,3); A('s_waitcnt lgkmcnt(6)'); frag_mfma(A,0,swap)
    A(f's_waitcnt lgkmcnt(0)\ns_add_u32 s{sSTEP}, s{sSTEP}, 1')
def gemm_body(A,swap,name):
    gemm_step(A,swap,True,16,True)
    L=A.lab('GL')
    A(f'{L}:')
    gemm_step(A,swap,False,16,True)
    A(f's_cmp_lt_u32 s{sKB}, s{sN}\ns_cbranch_scc1 {L}')
    gemm_step(A,swap,False,16,False)
    gemm_step(A,swap,False,8,False)
    gemm_step(A,swap,False,0,False)
    frag_mfma(A,1,swap)
def silu(A,x,t):
    A(f'v_mul_f32 v{t}, 0xbfb8aa3b, v{x}\nv_exp_f32 v{t}, v{t}\nv_add_f32 v{t}, 1.0, v{t}\nv_rcp_f32 v{t}, v{t}\nv_mul_f32 v{x}, v{x}, v{t}')
def pack_swap(A,d,o):
    for q in range(4):
        A(f'v_cvt_pk_bf16_f32 v{o+2*q}, v{d+4*q}, v{d+4*q+1}\nv_cvt_pk_bf16_f32 v{o+2*q+1}, v{d+4*q+2}, v{d+4*q+3}')
    for qq in range(2):
        A(f'v_permlane32_swap_b32 v{o+4*qq}, v{o+4*qq+2}\nv_permlane32_swap_b32 v{o+4*qq+1}, v{o+4*qq+3}')
def worker_batch(A):
    A(f'''s_mul_i32 s{sW3}, s{sID}, 21846
    s_lshr_b32 s{sW3}, s{sW3}, 16
    s_mul_i32 s28, s{sW3}, 3
    s_sub_u32 s{sWM}, s{sID}, s28
    s_mov_b32 s{sR}, 0''')
    A(f'''s_lshr_b32 s28, s{sWV}, 1
    s_and_b32 s29, s{sWV}, 1
    v_and_b32 v2, 31, v0
    v_lshrrev_b32 v3, 5, v0
    v_bfe_u32 v4, v0, 1, 3
    s_lshl_b32 s30, s28, 13
    v_lshl_add_u32 v5, v2, 7, s30''')
    for kk in range(4):
        A(f'v_add_u32 v6, {2*kk}, v3\nv_xor_b32 v6, v6, v4\nv_lshl_add_u32 v{VA0+kk}, v6, 4, v5')
    A(f'''v_lshrrev_b32 v2, 5, v0
    v_bfe_u32 v3, v0, 2, 2
    v_lshl_add_u32 v2, v2, 3, v3
    v_lshlrev_b32 v2, 7, v2
    v_bfe_u32 v3, v0, 3, 1
    v_xor_b32 v3, s29, v3
    v_lshl_add_u32 v2, v3, 6, v2
    v_bfe_u32 v3, v0, 4, 1
    v_lshl_add_u32 v2, v3, 5, v2
    v_and_b32 v3, 3, v0
    v_lshl_add_u32 v2, v3, 3, v2
    v_add_u32 v{VB0}, 16384, v2''')
    A('WTASK:')
    A(f'''s_mul_i32 s28, s{sR}, 192
    s_add_u32 s28, s28, s{sID}
    s_cmp_ge_u32 s28, 2048
    s_cbranch_scc1 WBATCH_END
    s_cmp_ge_u32 s28, 960
    s_cbranch_scc1 WD1
    s_mul_i32 s{sRB}, s{sR}, 3
    s_add_u32 s{sRB}, s{sRB}, s{sWM}
    s_mov_b32 s{sNB}, s{sW3}
    s_branch WD_KV
    WD1:
    s_sub_u32 s28, s28, 960
    s_cmp_ge_u32 s28, 64
    s_cbranch_scc1 WD2
    s_mov_b32 s{sRB}, 15
    s_mov_b32 s{sNB}, s28
    WD_KV:
    s_mov_b32 s{sTYPE}, 0
    s_cmp_lt_u32 s{sNB}, 32
    s_cbranch_scc1 WD_K
    s_sub_u32 s{sNB}, s{sNB}, 32
    s_mov_b32 s{sTYPE}, 1''')
    srd(A,SB,32,5242880)
    A(f's_mov_b32 s{sOB}, {VF}\ns_branch WD_QKV\nWD_K:')
    srd(A,SB,24,5242880)
    A(f'''s_mov_b32 s{sOB}, {KF}
    s_branch WD_QKV
    WD2:
    s_sub_u32 s28, s28, 64
    s_cmp_ge_u32 s28, 432
    s_cbranch_scc1 WD3
    s_mul_i32 s29, s28, 607
    s_lshr_b32 s29, s29, 16
    s_mul_i32 s30, s29, 108
    s_sub_u32 s30, s28, s30
    s_and_b32 s31, s30, 3
    s_lshl_b32 s29, s29, 2
    s_add_u32 s{sRB}, s29, s31
    s_lshr_b32 s{sNB}, s30, 2
    s_mov_b32 s{sTYPE}, 3
    s_cmp_lt_u32 s{sWV}, 2
    s_cbranch_scc1 WD_G''')
    srd(A,SB,72,2211840); A('s_branch WD_G2\nWD_G:'); srd(A,SB,64,2211840)
    A(f'''WD_G2:
    s_mov_b32 s{sLDA}, 1280
    s_mov_b32 s{sLDB}, 3456
    s_mov_b32 s{sN}, 10
    s_lshl_b32 s{sTB}, s{sNB}, 7
    s_mul_i32 s{sTA}, s{sRB}, {128*1280}
    s_add_u32 s{sTA}, s{sTA}, {XN}
    s_branch WD_DONE
    WD3:
    s_sub_u32 s28, s28, 432
    s_cmp_ge_u32 s28, 512
    s_cbranch_scc1 WD4
    s_lshr_b32 s29, s28, 7
    s_lshl_b32 s29, s29, 2
    s_and_b32 s30, s28, 3
    s_add_u32 s{sRB}, s29, s30
    s_bfe_u32 s{sNB}, s28, 0x50002
    s_mov_b32 s{sTYPE}, 2''')
    srd(A,SB,16,5242880)
    A(f'''s_mov_b32 s{sOB}, {QF}
    WD_QKV:
    s_mov_b32 s{sLDA}, 1280
    s_mov_b32 s{sLDB}, 8192
    s_mov_b32 s{sN}, 10
    s_lshl_b32 s{sTB}, s{sNB}, 8
    s_lshr_b32 s29, s{sWV}, 1
    s_lshl_b32 s29, s29, 7
    s_add_u32 s{sTB}, s{sTB}, s29
    s_mul_i32 s{sTA}, s{sRB}, {128*1280}
    s_add_u32 s{sTA}, s{sTA}, {XN}
    s_branch WD_DONE
    WD4:
    s_sub_u32 s28, s28, 512
    s_mul_i32 s{sRB}, s28, 13108
    s_lshr_b32 s{sRB}, s{sRB}, 16
    s_mul_i32 s29, s{sRB}, 5
    s_sub_u32 s{sNB}, s28, s29
    s_mov_b32 s{sTYPE}, 4''')
    srd(A,SB,80,2211840)
    A(f'''s_mov_b32 s{sLDA}, 3456
    s_mov_b32 s{sLDB}, 1280
    s_mov_b32 s{sN}, 27
    s_lshl_b32 s{sTB}, s{sNB}, 8
    s_lshr_b32 s29, s{sWV}, 1
    s_lshl_b32 s29, s29, 7
    s_add_u32 s{sTB}, s{sTB}, s29
    s_mul_i32 s{sTA}, s{sRB}, {128*3456}
    s_add_u32 s{sTA}, s{sTA}, {HB}
    s_lshl_b32 s30, s{sRB}, 7
    s_add_u32 s30, s30, {C_H0}''')
    poll_all(A,'s30',27,3)
    A('WD_DONE:')
    A(f'''v_lshrrev_b32 v2, 3, v0
    s_lshl_b32 s28, s{sWV}, 5
    v_add_u32 v3, s28, v2
    v_and_b32 v4, 7, v0
    v_lshrrev_b32 v5, 4, v0''')
    for i in range(4):
        A(f'''v_add_u32 v6, {8*i}, v3
        v_mul_lo_u32 v6, v6, s{sLDA}
        v_add_u32 v7, {(4*i)&7}, v5
        v_xor_b32 v7, v7, v4
        v_lshl_add_u32 v6, v7, 4, v6
        v_subrev_u32 v{VDA+i}, {1024*i}, v6''')
    A(f'''s_and_b32 s28, s{sWV}, 1
    s_lshl_b32 s28, s28, 5
    v_add_u32 v3, s28, v2
    v_and_b32 v5, 1, v5
    v_lshlrev_b32 v5, 2, v5
    v_xor_b32 v7, v5, v4''')
    for i in range(4):
        A(f'''v_add_u32 v6, {8*i}, v3
        v_mul_lo_u32 v6, v6, s{sLDB}
        v_lshl_add_u32 v6, v7, 4, v6
        v_subrev_u32 v{VDB+i}, {1024*i}, v6''')
    A(f's_mov_b32 s{sPA}, s{sTA}\ns_mov_b32 s{sPB}, s{sTB}\ns_mov_b32 s{sKB}, 0\ns_mov_b32 s{sSTEP}, 0')
    for i in range(3): gemm_dma(A)
    A(f's_cmp_eq_u32 s{sTYPE}, 1\ns_cbranch_scc1 WG_NS')
    gemm_body(A,True,'S')
    A(f's_cmp_eq_u32 s{sTYPE}, 3\ns_cbranch_scc1 WE_F1\ns_cmp_eq_u32 s{sTYPE}, 4\ns_cbranch_scc1 WE_F2')
    def kv_addr():
        A(f'''v_bfe_u32 v2, v0, 4, 1
        v_lshlrev_b32 v2, 10, v2
        v_lshrrev_b32 v3, 5, v0
        v_lshl_add_u32 v2, v3, 8, v2
        v_and_b32 v3, 15, v0
        v_lshl_add_u32 v2, v3, 4, v2
        s_and_b32 s28, s{sWV}, 1
        s_lshl_b32 s28, s28, 11
        v_add_u32 v2, s28, v2
        s_lshl_b32 s28, s{sRB}, 2
        s_and_b32 s29, s{sWV}, 2
        s_add_u32 s28, s28, s29
        s_lshl_b32 s28, s28, 5
        s_add_u32 s28, s28, s{sNB}
        s_lshl_b32 s28, s28, 13
        s_add_u32 s28, s28, s{sOB}''')
    kv_addr()
    for i in range(2):
        for j in range(2):
            o=8+16*i+8*j
            pack_swap(A,ACC+32*i+16*j,o)
            A(f's_add_u32 s29, s28, {i*262144+j*4096}')
            for q in range(2): A(f'buffer_store_dwordx4 v[{o+4*q}:{o+4*q+3}], v2, s[{SWS}:{SWS+3}], s29 offen offset:{512*q} sc1')
    A(f's_cmp_eq_u32 s{sTYPE}, 0\ns_mov_b32 s30, {C_Q0}\ns_cselect_b32 s30, {C_KV0}, s30\ns_branch WE_SIG')
    A('WG_NS:')
    gemm_body(A,False,'N')
    kv_addr()
    for i in range(2):
        for j in range(2):
            o=8+16*i+8*j; d=ACC+32*i+16*j
            for pc,(qa,qb) in enumerate(((0,2),(1,3))):
                for k,q in enumerate((qa,qb)):
                    A(f'v_cvt_pk_bf16_f32 v{o+4*pc+2*k}, v{d+4*q}, v{d+4*q+1}\nv_cvt_pk_bf16_f32 v{o+4*pc+2*k+1}, v{d+4*q+2}, v{d+4*q+3}')
            A(f's_add_u32 s29, s28, {i*262144+j*4096}')
            for q in range(2): A(f'buffer_store_dwordx4 v[{o+4*q}:{o+4*q+3}], v2, s[{SWS}:{SWS+3}], s29 offen offset:{512*q} sc1')
    A(f's_mov_b32 s30, {C_KV0}\ns_branch WE_SIG')
    def rm_addr(ld):
        A(f'''v_and_b32 v2, 31, v0
        s_lshr_b32 s28, s{sWV}, 1
        s_lshl_b32 s28, s28, 6
        v_add_u32 v2, s28, v2
        v_mul_u32_u24 v2, {ld}, v2
        v_lshrrev_b32 v3, 5, v0
        v_lshl_add_u32 v2, v3, 4, v2
        s_and_b32 s28, s{sWV}, 1
        s_lshl_b32 s28, s28, 6
        v_add_u32 v2, s28, v2''')
    A('WE_F1:')
    rm_addr(3456)
    A(f's_mul_i32 s28, s{sRB}, {128*3456}\ns_lshl_b32 s29, s{sNB}, 7\ns_add_u32 s28, s28, s29\ns_add_u32 s28, s28, {HB}')
    for i in range(2):
        d=ACC+32*i
        for r in range(16):
            silu(A,d+r,4+(r&3)); A(f'v_mul_f32 v{d+r}, v{d+r}, v{d+16+r}')
        o=8+8*i
        pack_swap(A,d,o)
        A(f's_add_u32 s29, s28, {i*32*3456}')
        for q in range(2): A(f'buffer_store_dwordx4 v[{o+4*q}:{o+4*q+3}], v2, s[{SWS}:{SWS+3}], s29 offen offset:{32*q} sc1')
    A(f's_mov_b32 s30, {C_H0}\ns_branch WE_SIG')
    A('WE_F2:')
    rm_addr(1280)
    A(f's_mul_i32 s28, s{sRB}, {128*1280}\ns_lshl_b32 s29, s{sNB}, 8\ns_add_u32 s28, s28, s29\ns_add_u32 s28, s28, {GB}')
    for i in range(2):
        for j in range(2):
            d=ACC+32*i+16*j; o=8+16*i+8*j
            for r in range(16): silu(A,d+r,4+(r&3))
            pack_swap(A,d,o)
            A(f's_add_u32 s29, s28, {i*32*1280+j*128}')
            for q in range(2): A(f'buffer_store_dwordx4 v[{o+4*q}:{o+4*q+3}], v2, s[{SWS}:{SWS+3}], s29 offen offset:{32*q} sc1')
    A(f's_mov_b32 s30, {C_G0}')
    A(f'WE_SIG:\ns_cmp_lt_u32 s{sTYPE}, 2\ns_cselect_b32 s29, 8, 7\ns_lshl_b32 s29, s{sRB}, s29\ns_add_u32 s30, s30, s29\ns_cmp_eq_u32 s{sTYPE}, 1\ns_cselect_b32 s29, 32, 0\ns_add_u32 s29, s29, s{sNB}\ns_lshl_b32 s29, s29, 2\ns_add_u32 s30, s30, s29')
    signal(A,'s30')
    A(f's_add_u32 s{sR}, s{sR}, 1\ns_branch WTASK\nWBATCH_END:')
    stamp(A,25,2,[(sWV,0)])
```

```python
from asmlib import *
from gen1 import *
WL=0; VXL=122880; MI=131072; EX=141312; RED=EX+4096; OI=149504; KX=151552; SPARE=159744
sS=50; sBUF=51; sBUFN=52; sBUFR=53; sTAG=54; sPW0=55; sPW1=56; sPW2=57; sPR=58; sSL=59; sKVO=60; sLOC=61; sREM=62; sFM=63; sT=64; sT2=65; sT3=66; sCNT=67; sSC=68; sLG=70; sRG=71; sFMP=46; sWU=47; sIML=48; sIMR=49; sPUB=44; sKMO=45
EXM=70
SMF='v_smfmac_f32_16x16x64_bf16'
Areg=lambda i:8+4*i
DQ=[28,32]; DK=[36,40]; DV=[44,48]; L=[52,60]
class Q:
    def __init__(s,A,name): s.A=A; s.q=[]; s.name=name
    def add(s,tag,n=1): s.q+= [tag]*n
    def wait(s,tag):
        if tag not in s.q: return
        i=max(k for k,t in enumerate(s.q) if t==tag); n=len(s.q)-1-i
        s.A(f's_waitcnt {s.name}({n})'); s.q=s.q[i+1:]
    def all(s): s.A(f's_waitcnt {s.name}(0)'); s.q=[]
def slotreg(p): return a(8*p,8) if p<32 else v(72+8*(p-32),8)
def slotpair(p,t): return a(8*p+2*t,2) if p<32 else v(72+8*(p-32)+2*t,2)
def P_loc(i,m): return 5*i+m
def P_rem(i,m): return 25+4*i+m
def P_wo(ks,t): return 45+5*ks+t
def ldsslot_addr(k,half):
    return (6,k*8192+1024*half) if k<8 else (7,(k-8)*8192+1024*half)
def read_slot(A,dq,k,dst,tag):
    for hf in range(2):
        r,o=ldsslot_addr(k,hf); A(f'ds_read_b128 v[{dst+4*hf}:{dst+4*hf+3}], v{r} offset:{o}')
    dq.add(tag,2)
TSON=False
TSM=0; TSB=36
RTON=False
def TS(A,k):
    if RTON:
        for kk,st in ([(7,40),(11,41)] if k==7 else [(k,41)]):
            l=A.lab('TS'); A(f's_cmp_lg_u32 s{sS}, {st}\ns_cbranch_scc1 {l}\ns_memrealtime s[{72+2*kk}:{73+2*kk}]\n{l}:')
        return
    if not TSON or k==10 and False: return
    if TSM==3:
        if k!=0: return
        for j in range(11):
            l=A.lab('TS'); A(f's_cmp_lg_u32 s{sS}, {TSB+j}\ns_cbranch_scc1 {l}\ns_memtime s[{72+2*j}:{73+2*j}]\n{l}:')
        return
    st=21 if TSM==0 else (10+4*(k//2) if TSM==1 else 10+4*((k+1)//2))
    if k==10: st+=1
    l=A.lab('TS'); A(f's_cmp_lg_u32 s{sS}, {st}\ns_cbranch_scc1 {l}\ns_memtime s[{72+2*k}:{73+2*k}]\n{l}:')
def modal(A,fast,slow):
    l1=A.lab('MS'); l2=A.lab('MD')
    A(f's_cmp_eq_u32 s{sMODE}, 0\ns_cbranch_scc1 {l1}'); A(fast); A(f's_branch {l2}\n{l1}:'); A(slow); A(f'{l2}:')
def weights_prologue(A):
    units=[]
    for i in range(5): units+=[('q',0,0,i),('q',1,0,i),('k',0,0,i),('k',1,0,i),('v',0,0,i)]
    for i in range(5): units+=[('q',0,1,i),('q',1,1,i),('k',0,1,i),('k',1,1,i)]
    for ks in range(2):
        for t in range(5): units.append(('o',t,ks,0))
    rem=[('v',k&1,1,k>>1) for k in range(10)]
    units+=rem[5:10]
    units+=[('v',1,0,i) for i in range(5)]
    units+=rem[0:5]
    assert len(units)==70
    SR={'q':8,'k':12,'v':16,'o':20}
    srd(A,8,16,5242880); srd(A,12,24,5242880); srd(A,16,32,5242880); srd(A,20,40,5242880)
    A(f'''v_lshrrev_b32 v2, 3, v0
    s_lshl_b32 s28, s{sWV}, 4
    v_add_u32 v2, s28, v2
    v_bfe_u32 v3, v0, 1, 2
    v_lshrrev_b32 v4, 5, v0
    v_and_b32 v5, 1, v0''')
    for ii in range(2):
        A(f'''v_add_u32 v6, {2*ii}, v4
        v_and_b32 v6, 3, v6
        v_xor_b32 v6, v6, v3
        v_lshl_or_b32 v6, v6, 1, v5
        v_lshlrev_b32 v6, 4, v6
        v_add_u32 v7, {8*ii}, v2
        v_lshl_add_u32 v{58+ii}, v7, 13, v6
        v_mul_u32_u24 v7, 1280, v7
        v_add_u32 v{60+ii}, v7, v6
        v_subrev_u32 v{58+ii}, {1024*ii}, v{58+ii}
        v_subrev_u32 v{60+ii}, {1024*ii}, v{60+ii}''')
    A(f'''v_lshrrev_b32 v2, 5, v0
    v_lshlrev_b32 v2, 4, v2
    v_bfe_u32 v3, v0, 4, 1
    v_lshl_add_u32 v2, v3, 2, v2
    v_bfe_u32 v4, v0, 2, 1
    v_add_u32 v2, v2, v4
    v_bfe_u32 v4, v0, 3, 1
    v_lshl_add_u32 v2, v4, 3, v2
    v_lshlrev_b32 v2, 7, v2
    v_lshl_add_u32 v3, v4, 1, v3
    v_xor_b32 v3, s{sWV}, v3
    v_lshl_add_u32 v2, v3, 5, v2
    v_and_b32 v3, 3, v0
    v_lshl_add_u32 v62, v3, 3, v2
    v_add_u32 v63, 0x10000, v62
    s_lshl_b32 s28, s{sWV}, 11
    v_lshl_add_u32 v64, v0, 4, s28
    v_add_u32 v65, 0x10000, v64''')
    A(f'''s_lshl_b32 s40, s{sID}, 8
    s_mul_i32 s41, s{sX}, {5*64*8192}
    s_sub_u32 s42, {5*64*8192}, s41
    s_add_u32 s41, s41, s40
    s_add_u32 s42, s42, s40
    s_mul_i32 s43, s{sID}, {128*1280}
    s_mul_i32 s44, s{sX}, 640
    s_add_u32 s43, s43, s44
    s_lshl_b32 s45, s{sWV}, 11''')
    def issue(j):
        for i in range(5):
            m,u,rel,ii=units[5*j+i]; pos=(j%3)*5+i
            if m=='o': A(f's_add_u32 s28, s43, {rel*64*1280+u*128}'); vv=60
            else: A(f's_add_u32 s28, s{41+rel}, {ii*64*8192+u*128}'); vv=58
            A(f's_add_u32 m0, s45, {pos*8192}')
            for k in range(2): A(f'buffer_load_dwordx4 v{vv+k}, s[{SR[m]}:{SR[m]+3}], s28 offen offset:{1024*k} lds')
    for j in range(3): issue(j)
    for j in range(14):
        A(f's_waitcnt vmcnt({10*min(2,13-j)})\ns_barrier')
        for i in range(5):
            pos=(j%3)*5+i; r,o=(62,pos*8192) if pos<8 else (63,pos*8192-65536)
            for t in range(4):
                off=o+4096*(t>>1)+256*(t&1)
                dst=slotpair(5*j+i,t) if j<11 else v(8+8*i+2*t,2)
                A(f'ds_read_b64_tr_b16 {dst}, v{r} offset:{off}')
            if i%2==1: A('s_waitcnt lgkmcnt(4)')
        A('s_waitcnt lgkmcnt(0)\ns_barrier')
        if j>=11:
            for i in range(5):
                pos=(j%3)*5+i; r,o=(64,pos*8192) if pos<8 else (65,pos*8192-65536)
                for hf in range(2): A(f'ds_write_b128 v{r}, v[{8+8*i+4*hf}:{8+8*i+4*hf+3}] offset:{o+1024*hf}')
            A('s_waitcnt lgkmcnt(0)')
        if j+3<14: issue(j+3)

def chk(A,regs,n,t=68):
    A(f'v_max3_u32 v{t}, v{regs}, v{regs+1}, v{regs+2}')
    A(f'v_max3_u32 v{t}, v{t}, v{regs+3}, v{regs+4}\nv_max3_u32 v{t+1}, v{regs+5}, v{regs+6}, v{regs+7}\nv_max_u32 v{t}, v{t}, v{t+1}')
    A(f'v_cmp_eq_u32 vcc, -1, v{t}')
def gl(A,regs,soff):
    for i in range(2): A(f'buffer_load_dwordx4 v[{regs+4*i}:{regs+4*i+3}], v0, s[{SWS}:{SWS+3}], s{soff} offen offset:{1024*i} sc1')
CNT=False
def cnt(A,r):
    if CNT: A(f's_add_u32 s{r}, s{r}, 1')
def gather_wait(A,regs,soff,code):
    Lp=A.lab('GP'); D=A.lab('GD')
    A(f'{Lp}:\ns_waitcnt vmcnt(0)')
    chk(A,regs,2)
    A(f's_cbranch_vccz {D}')
    gl(A,regs,soff)
    cnt(A,38 if code==11 else 39)
    A(f's_add_u32 s{sCNT}, s{sCNT}, 1\ns_cmp_lt_u32 s{sCNT}, {SPIN}\ns_cbranch_scc1 {Lp}')
    abort(A,code)
    A(f'{D}:')
def kv_dma(A,part):
    if part==0:
        A(f"""s_lshl_b32 s{sT2}, s{sWV}, 11
        s_add_u32 s{sT}, s{sKVO}, s{sT2}
        s_add_u32 s{sT}, s{sT}, {KF}
        s_add_u32 m0, s{sT2}, {KX}
        s_lshl_b32 s{sT3}, s{sWV}, 10
        buffer_load_dwordx4 v0, s[{SWS}:{SWS+3}], s{sT} offen sc1 lds
        buffer_load_dwordx4 v0, s[{SWS}:{SWS+3}], s{sT} offen offset:1024 sc1 lds""")
    else:
        A(f"""s_add_u32 s{sT}, s{sKVO}, s{sT3}
        s_add_u32 s{sT}, s{sT}, {VF}
        s_add_u32 m0, s{sT2}, {VXL}
        s_add_u32 s{sT3}, s{sT}, 3072
        buffer_load_dwordx4 v0, s[{SWS}:{SWS+3}], s{sT} offen sc1 lds
        buffer_load_dwordx4 v0, s[{SWS}:{SWS+3}], s{sT3} offen offset:1024 sc1 lds""")
def rec(A,opts):
    global TSON,TSM,CNT,RTON
    RTON='rt' in opts
    CNT='cnt' in opts
    TSON=any(o in opts for o in('ts','tse','tso','tss')); TSM=1 if 'tse' in opts else 2 if 'tso' in opts else 3 if 'tss' in opts else 0
    me=[(sID,0),(sX,0),(sWV,0)]
    stamp(A,17,2,me)
    weights_prologue(A)
    stamp(A,18,2,me)
    A(f"""v_and_b32 v8, 15, v0
    v_lshrrev_b32 v9, 4, v0
    s_lshl_b32 s28, s{sWV}, 4
    v_add_u32 v2, s28, v8
    v_lshlrev_b32 v2, 5, v2
    v_lshl_add_u32 v2, v9, 3, v2
    v_add_u32 v2, {EX}, v2
    v_bfe_u32 v10, v0, 2, 2
    v_lshl_add_u32 v3, v9, 3, v10
    v_lshlrev_b32 v3, 5, v3
    v_and_b32 v10, 3, v0
    v_lshl_add_u32 v3, v10, 3, v3
    v_add_u32 v3, {EX}, v3
    v_lshrrev_b32 v10, 2, v8
    v_lshrrev_b32 v12, 5, v0
    v_lshl_add_u32 v10, v10, 1, v12
    v_lshlrev_b32 v10, 1, v10
    v_add_u32 v10, s28, v10
    v_and_b32 v11, 1, v0
    v_add_u32 v10, v10, v11
    v_lshlrev_b32 v10, 4, v10
    v_and_b32 v12, 1, v9
    v_lshl_add_u32 v4, v12, 3, v10
    v_add_u32 v4, {OI}, v4
    v_mov_b32 v1, 0x4444
    v_mov_b32 v12, 0xeeee
    v_bfe_u32 v11, v0, 1, 1
    v_cmp_eq_u32 vcc, 1, v11
    v_cndmask_b32 v1, v1, v12, vcc
    v_lshlrev_b32 v0, 4, v0
    v_add_u32 v5, {MI}, v0
    s_lshl_b32 s28, s{sWV}, 11
    v_add_u32 v6, s28, v0
    v_add_u32 v7, 0x10000, v6""")
    A(f"""s_mov_b32 s{sS}, 0
    s_mov_b32 s{sBUF}, {MEMB}
    s_mov_b32 s{sBUFN}, {MEMB+20480}
    s_mov_b32 s{sBUFR}, {MEMB+40960}
    s_mov_b32 s{sTAG}, 0
    s_lshl_b32 s28, s{sX}, 5
    s_add_u32 s28, s28, s{sID}
    s_mul_i32 s{sPW0}, s28, 10240
    s_lshl_b32 s29, s{sWV}, 9
    s_add_u32 s{sPW0}, s{sPW0}, s29
    s_add_u32 s{sPW0}, s{sPW0}, {PBUF}
    s_add_u32 s{sPW1}, s{sPW0}, 4096
    s_add_u32 s{sPW2}, s{sPW0}, 8192
    s_lshl_b32 s28, s{sX}, 5
    s_mul_i32 s{sPR}, s28, 10240
    s_lshl_b32 s29, s{sID}, 9
    s_add_u32 s{sPR}, s{sPR}, s29
    s_lshl_b32 s29, s{sWV}, 7
    s_add_u32 s{sPR}, s{sPR}, s29
    s_add_u32 s{sPR}, s{sPR}, {PBUF}
    s_add_u32 s32, s{sPR}, 81920
    s_add_u32 s33, s{sPR}, 163840
    s_add_u32 s34, s{sPR}, 245760
    s_mul_i32 s{sSL}, s{sX}, 5120
    s_lshl_b32 s29, s{sID}, 8
    s_add_u32 s{sSL}, s{sSL}, s29
    s_lshl_b32 s{sKVO}, s{sID}, 13
    s_lshl_b32 s{sFM}, s{sID}, 5
    s_lshl_b32 s28, s{sX}, 4
    s_add_u32 s{sFM}, s{sFM}, s28
    s_lshl_b32 s28, s{sWV}, 2
    s_add_u32 s{sFM}, s{sFM}, s28
    s_add_u32 s{sFM}, s{sFM}, {F_M}
    s_mov_b32 s{sFMP}, 0x19000
    s_mov_b32 s{sSC}, 0x3e0293ee
    s_mov_b32 s{sCNT}, 0
    s_cmp_gt_u32 s{sWV}, 1
    s_cselect_b32 s{sWU}, {VF-KF}, 0
    s_add_u32 s{sWU}, s{sWU}, {KF}
    s_and_b32 s28, s{sWV}, 1
    s_lshl_b32 s28, s28, 12
    s_add_u32 s{sWU}, s{sWU}, s28
    s_add_u32 s{sWU}, s{sWU}, {32*8192}""")
    A(f"""s_sub_u32 s28, s{sWV}, 1
    s_lshl_b32 s28, s28, 11
    s_cmp_eq_u32 s{sWV}, 3
    s_cselect_b32 s{sIML}, 3072, s28
    s_mul_i32 s{sLOC}, s{sX}, 5120
    s_sub_u32 s{sREM}, {5120+10240}, s{sLOC}
    s_add_u32 s{sLOC}, s{sLOC}, s{sIML}
    s_mov_b32 s{sIMR}, s{sIML}
    s_add_u32 s{sREM}, s{sREM}, s{sIMR}
    s_add_u32 s{sIMR}, s{sIMR}, 5120
    s_add_u32 s{sIML}, s{sIML}, {MI}
    s_add_u32 s{sIMR}, s{sIMR}, {MI}
    s_add_u32 s{sLG}, s{sBUF}, s{sLOC}
    s_add_u32 s{sRG}, s{sBUF}, s{sREM}""")
    A(f'v_lshrrev_b32 v8, 2, v0\nv_add_u32 v8, {RED}, v8\nv_mov_b32 v9, -1\nds_write_b32 v8, v9')
    for r in range(28,52,2): A(f'v_mov_b64 v[{r}:{r+1}], 0')
    if 'norecwait' not in opts: poll_all(A,C_KV0,64,10,vt=8)
    if RTON:
        for k in range(72,96): A(f's_mov_b32 s{k}, 0')
    if CNT: A('s_mov_b32 s38, 0\ns_mov_b32 s39, 0\ns_mov_b32 s40, 0\ns_mov_b32 s41, 0')
    stamp(A,19,8,me)
    A(f's_cmp_eq_u32 s{sMODE}, 0\ns_cbranch_scc1 STEP_S')
    step(A,opts,'F',me); step(A,opts,'S',me)
    A(f"""RECEND:
    s_waitcnt vmcnt(0)
    s_add_u32 s{sT}, s{sFM}, {63*1024}
    buffer_store_dword v1, off, s[{SWS}:{SWS+3}], s{sT} sc1""")
    stamp(A,29,8,me)
    if RTON:
        A(f'''s_lshl_b32 s28, s{sX}, 5
        s_add_u32 s28, s28, s{sID}
        s_lshl_b32 s28, s28, 8
        s_lshl_b32 s29, s{sWV}, 6
        s_add_u32 s28, s28, s29
        s_add_u32 s28, s28, 0x30000
        s_waitcnt lgkmcnt(0)
        v_mov_b32 v12, 0''')
        for k in range(12): A(f'v_mov_b32 v8, s{72+2*k}\nbuffer_store_dword v8, v12, s[{SWS}:{SWS+3}], s28 offen offset:{4*k} sc1')
    if CNT:
        A(f'''s_lshl_b32 s28, s{sX}, 5
        s_add_u32 s28, s28, s{sID}
        s_lshl_b32 s28, s28, 6
        s_lshl_b32 s29, s{sWV}, 4
        s_add_u32 s28, s28, s29
        s_add_u32 s28, s28, 0x30000
        v_mov_b32 v8, s38
        v_mov_b32 v9, s39
        v_mov_b32 v10, s40
        v_mov_b32 v11, s41
        v_mov_b32 v12, 0
        buffer_store_dwordx4 v[8:11], v12, s[{SWS}:{SWS+3}], s28 offen sc1''')
    if TSON:
        l=A.lab('T')
        A(f's_or_b32 s28, s{sID}, s{sX}\ns_or_b32 s28, s28, s{sWV}\ns_cmp_lg_u32 s28, 0\ns_cbranch_scc1 {l}\ns_waitcnt lgkmcnt(0)')
        srd(A,SC,96,256)
        for k in range(12): A(f's_mov_b32 s28, s{72+2*k}\nv_mov_b32 v8, s28\nv_mov_b32 v9, {128+4*k}\nbuffer_store_dword v8, v9, s[{SC}:{SC+3}], 0 offen')
        A(f'v_mov_b32 v8, s{sCNT}\nv_mov_b32 v9, {128+48}\nbuffer_store_dword v8, v9, s[{SC}:{SC+3}], 0 offen')
        A(f'{l}:')
    A('s_waitcnt vmcnt(0)\ns_endpgm')
def step(A,opts,M,me):
    fast=M=='F'; pl='' if fast else ' sc1'
    RI=int([o[2:] for o in opts if o.startswith('ri')][0]) if any(o.startswith('ri') for o in opts) else 0
    KD=int([o[2:] for o in opts if o.startswith('kd')][0]) if any(o.startswith('kd') for o in opts) else 0
    dq=Q(A,'lgkmcnt')
    WS=f's[{SWS}:{SWS+3}]'
    def smf(D,a_,B): A(f'{SMF} v[{D}:{D+3}], v[{a_}:{a_+3}], {B}, v1')
    def fold(D,dst): A(f'v_pk_add_f32 v[{D}:{D+1}], v[{D}:{D+1}], v[{D+2}:{D+3}]\nv_cvt_pk_bf16_f32 v{dst}, v{D}, v{D+1}')
    DQ0,DK0,DQ1,DK1=28,32,36,40
    A(f'STEP_{M}:')
    if fast:
        for k,sv in enumerate((16,32,48)): stamp(A,20+k,8,me+[(sS,sv)])
    TS(A,0)
    z0=A.lab('Z'); ld=A.lab('LD')
    def vdma():
        A(f"""s_lshl_b32 s{sT2}, s{sWV}, 11
        s_lshl_b32 s{sT3}, s{sWV}, 10
        s_add_u32 s{sT}, s{sKVO}, s{sT3}
        s_add_u32 s{sT}, s{sT}, {VF}
        s_add_u32 m0, s{sT2}, {VXL}
        s_add_u32 s{sT3}, s{sT}, 3072
        buffer_load_dwordx4 v0, {WS}, s{sT} offen sc1 lds
        buffer_load_dwordx4 v0, {WS}, s{sT3} offen offset:1024 sc1 lds""")
    A(f's_cmp_eq_u32 s{sWV}, 0\ns_cbranch_scc1 {z0}')
    if 'gs' in opts:
        gl(A,52,sLG)
        vdma()
        k3=A.lab('K3')
        A(f"""s_cmp_eq_u32 s{sWV}, 3
        s_cbranch_scc1 {k3}
        s_lshl_b32 s{sT2}, s{sWV}, 10
        s_add_u32 s{sT}, s{sKVO}, s{sT2}
        s_add_u32 s{sT}, s{sT}, {KF+5120}
        s_add_u32 m0, s{sT2}, {KX+5120}
        s_nop 0
        buffer_load_dwordx4 v0, {WS}, s{sT} offen sc1 lds
        {k3}:""")
        gl(A,60,sLG)
        Lp=A.lab('GP'); D1=A.lab('GD'); D2=A.lab('GD')
        A('s_waitcnt vmcnt(4)'); chk(A,52,2); A(f's_cbranch_vccz {D1}')
        A(f'{Lp}:'); gl(A,52,sLG)
        A('s_waitcnt vmcnt(2)'); chk(A,60,2); A(f's_cbranch_vccz {D2}')
        gl(A,60,sLG); cnt(A,38)
        A('s_waitcnt vmcnt(2)'); chk(A,52,2); A(f's_cbranch_vccz {D1}')
        A(f's_add_u32 s{sCNT}, s{sCNT}, 1\ns_cmp_lt_u32 s{sCNT}, {SPIN}\ns_cbranch_scc1 {Lp}')
        abort(A,11)
        A(f'{D2}:')
        if RTON: TS(A,10)
        A(f'v_add_u32 v68, s{sIML}, v0\nds_write_b128 v68, v[60:63]\nds_write_b128 v68, v[64:67] offset:1024')
        if RI==-2: A('s_waitcnt lgkmcnt(0)'); gl(A,60,sRG)
        A(f's_branch {ld}')
        A(f'{D1}:')
        if RTON: TS(A,10)
        if RI==-2: gl(A,60,sRG)
        A(f'v_add_u32 v68, s{sIML}, v0\nds_write_b128 v68, v[52:55]\nds_write_b128 v68, v[56:59] offset:1024')
        A(f's_branch {ld}\n{z0}:')
        A(f"""s_add_u32 s{sT}, s{sKVO}, {KF}
        s_mov_b32 m0, {KX}
        s_add_u32 s{sT2}, s{sT}, 4096""")
        for c in range(4): A(f'buffer_load_dwordx4 v0, {WS}, s{sT} offen offset:{1024*c} sc1 lds')
        A(f's_mov_b32 m0, {KX+4096}\ns_nop 0')
        for c in range(2): A(f'buffer_load_dwordx4 v0, {WS}, s{sT2} offen offset:{1024*c} sc1 lds')
        vdma()
        A(f's_waitcnt vmcnt(9)\n{ld}:')
    else:
        gl(A,8,sLG)
        gather_wait(A,8,sLG,11)
        if RTON: TS(A,10)
        if RI==-2: gl(A,60,sRG)
        A(f'v_add_u32 v68, s{sIML}, v0\nds_write_b128 v68, v[8:11]\nds_write_b128 v68, v[12:15] offset:1024')
        A(f's_branch {ld}\n{z0}:\ns_waitcnt vmcnt(1)\n{ld}:')
    dq.all(); A('s_barrier')
    TS(A,1)
    GS='gs' in opts; R2='r2' in opts
    R2I=int([o[3:] for o in opts if o.startswith('r2i')][0]) if any(o.startswith('r2i') for o in opts) else 2
    assert not R2 or GS
    for i in range(5):
        A(f'ds_read_b128 v[{Areg(i)}:{Areg(i)+3}], v5 offset:{1024*i}'); dq.add(f'A{i}')
        if i==0 and not GS: read_slot(A,dq,0,L[0],'L')
    if RI==-1:
        l=A.lab('W'); A(f's_cmp_eq_u32 s{sWV}, 0\ns_cbranch_scc1 {l}'); gl(A,60,sRG); A(f'{l}:')
    for i in range(5):
        dq.wait(f'A{i}')
        for m,D in enumerate((DQ0,DQ1,DK0,DK1,DV[0])): smf(D,Areg(i),slotreg(P_loc(i,m)))
        if GS:
            if i==0:
                l=A.lab('W'); A(f's_cbranch_scc1 {l}\ns_waitcnt vmcnt(2)\n{l}:')
            else:
                dq.wait('L'); smf(DV[1],Areg(i-1),v(L[0],8))
            read_slot(A,dq,i,L[0],'L')
            if R2 and i==R2I:
                l=A.lab('W'); A(f's_cmp_eq_u32 s{sWV}, 0\ns_cbranch_scc1 {l}'); gl(A,8,sRG); A(f'{l}:')
        else:
            dq.wait('L')
            smf(DV[1],Areg(i),v(L[0],8))
            if i<4: read_slot(A,dq,i+1,L[0],'L')
            if i==RI: gl(A,60,sRG)
            if i==max(RI,0)+KD and 'nokv' not in opts: kv_dma(A,0)
            if i==max(RI,0)+KD+1 and 'nokv' not in opts: kv_dma(A,1)
    TS(A,2)
    w0=A.lab('W'); w1=A.lab('W')
    A(f's_cmp_eq_u32 s{sWV}, 0\ns_cbranch_scc1 {w0}')
    if R2:
        Lp=A.lab('GP'); D1=A.lab('GD'); D2=A.lab('GD')
        A(f'{Lp}:\ns_waitcnt vmcnt(2)'); chk(A,60,2); A(f's_cbranch_vccz {D1}')
        gl(A,60,sRG); cnt(A,39)
        A('s_waitcnt vmcnt(2)'); chk(A,8,2); A(f's_cbranch_vccz {D2}')
        gl(A,8,sRG)
        A(f's_add_u32 s{sCNT}, s{sCNT}, 1\ns_cmp_lt_u32 s{sCNT}, {SPIN}\ns_cbranch_scc1 {Lp}')
        abort(A,13)
        A(f'{D2}:\nv_add_u32 v68, s{sIMR}, v0\nds_write_b128 v68, v[8:11]\nds_write_b128 v68, v[12:15] offset:1024\ns_branch {w1}')
        A(f'{D1}:\nv_add_u32 v68, s{sIMR}, v0\nds_write_b128 v68, v[60:63]\nds_write_b128 v68, v[64:67] offset:1024')
    else:
        gather_wait(A,60,sRG,13)
        A(f'v_add_u32 v68, s{sIMR}, v0\nds_write_b128 v68, v[60:63]\nds_write_b128 v68, v[64:67] offset:1024')
    A(f's_branch {w1}\n{w0}:\ns_waitcnt vmcnt(0)\n{w1}:')
    dq.all()
    if GS: smf(DV[1],Areg(4),v(L[0],8))
    A('s_barrier')
    TS(A,3)
    EA=(lambda i: 52+4*i if i<2 else Areg(i)) if R2 else Areg
    for i in range(5): A(f'ds_read_b128 v[{EA(i)}:{EA(i)+3}], v5 offset:{5120+1024*i}'); dq.add(f'A{i}')
    def rdK(j):
        for kt in range(2): A(f'ds_read_b128 v[{52+8*j+4*kt}:{55+8*j+4*kt}], v5 offset:{KX-MI+2048*j+1024*kt}'); dq.add(f'K{j}')
    b2=A.lab('B'); b4=A.lab('B')
    def flagst(): A(f'buffer_store_dword v1, off, {WS}, s{sFMP} sc1')
    def warm1(): A(f'v_lshlrev_b32 v70, 2, v0\ns_add_u32 s{sT}, s{sKVO}, s{sWU}\ns_mov_b32 m0, {SPARE}')
    def warm2(): A(f'buffer_load_dword v70, {WS}, s{sT} offen sc1 lds')
    def kvflag():
        A(f"""s_and_b32 s{sT}, s{sS}, 3
    s_cmp_lg_u32 s{sT}, 1
    s_cbranch_scc1 {b2}
    s_lshr_b32 s{sT}, s{sS}, 2
    s_lshl_b32 s{sT}, s{sT}, 8
    s_add_u32 s{sT}, s{sT}, {C_KV0+256}
    s_lshl_b32 s{sT2}, s{sWV}, 8
    s_add_u32 m0, s{sT2}, {SPARE+1024}
    v_lshrrev_b32 v71, 2, v0
    buffer_load_dword v71, {WS}, s{sT} offen sc1 lds
    {b2}:""")
    def resets():
        A(f"""s_cmp_lg_u32 s{sWV}, 0
    s_cbranch_scc1 {b4}
    s_cmp_ge_u32 s{sID}, 20
    s_cbranch_scc1 {b4}
    v_mov_b32 v26, -1
    v_lshrrev_b32 v27, 2, v0
    s_add_u32 s{sT}, s{sBUFR}, s{sSL}
    s_add_u32 s{sT2}, s{sT}, 10240
    buffer_store_dword v26, v27, {WS}, s{sT} offen{pl}
    buffer_store_dword v26, v27, {WS}, s{sT2} offen sc1
    {b4}:""".replace('v26','v70').replace('v27','v71'))
    if not R2:
        for j in range(2): rdK(j)
        flagst()
        if 'we' in opts: warm1(); warm2()
        for i in range(5): dq.wait(f'A{i}'); smf(DQ0,EA(i),slotreg(P_rem(i,0)))
        if 'we' not in opts: warm1()
        smf(DK0,EA(0),slotreg(P_rem(0,2)))
        if 'we' not in opts: warm2()
        for i in range(1,5): smf(DK0,EA(i),slotreg(P_rem(i,2)))
        fold(DQ0,68)
        smf(DQ1,EA(0),slotreg(P_rem(0,1)))
        kvflag()
        smf(DQ1,EA(1),slotreg(P_rem(1,1)))
        smf(DQ1,EA(2),slotreg(P_rem(2,1)))
        fold(DK0,69)
        A('ds_write_b64 v2, v[68:69]'); dq.add('W')
        smf(DQ1,EA(3),slotreg(P_rem(3,1)))
        smf(DQ1,EA(4),slotreg(P_rem(4,1)))
        smf(DK1,EA(0),slotreg(P_rem(0,3)))
        resets()
        smf(DK1,EA(1),slotreg(P_rem(1,3)))
        smf(DK1,EA(2),slotreg(P_rem(2,3)))
        fold(DQ1,70)
        smf(DK1,EA(3),slotreg(P_rem(3,3)))
        smf(DK1,EA(4),slotreg(P_rem(4,3)))
    else:
        rdK(1)
        for i in range(5): dq.wait(f'A{i}'); smf(DQ0,EA(i),slotreg(P_rem(i,0)))
        for i in range(5): smf(DK0,EA(i),slotreg(P_rem(i,2)))
        fold(DQ0,68)
        smf(DQ1,EA(0),slotreg(P_rem(0,1)))
        smf(DQ1,EA(1),slotreg(P_rem(1,1)))
        smf(DQ1,EA(2),slotreg(P_rem(2,1)))
        fold(DK0,69)
        A('ds_write_b64 v2, v[68:69]'); dq.add('W')
        smf(DQ1,EA(3),slotreg(P_rem(3,1)))
        A('s_waitcnt vmcnt(0)'); flagst()
        smf(DQ1,EA(4),slotreg(P_rem(4,1)))
        resets()
        smf(DK1,EA(0),slotreg(P_rem(0,3)))
        warm1()
        smf(DK1,EA(1),slotreg(P_rem(1,3)))
        rdK(0)
        warm2()
        smf(DK1,EA(2),slotreg(P_rem(2,3)))
        fold(DQ1,70)
        smf(DK1,EA(3),slotreg(P_rem(3,3)))
        smf(DK1,EA(4),slotreg(P_rem(4,3)))
        kvflag()
    A(f's_lshr_b32 s{sKMO}, s{sKVO}, 1\ns_lshl_b32 s{sT}, s{sWV}, 10\ns_add_u32 s{sKMO}, s{sKMO}, s{sT}\ns_add_u32 s{sKMO}, s{sKMO}, {KM}')
    fold(DK1,71)
    A('ds_write_b64 v2, v[70:71] offset:2048'); dq.add('W')
    dq.all(); A('s_barrier')
    TS(A,4)
    S0,S1,SM=28,32,68
    F=lambda j:8+4*j
    for j in range(4):
        for t in range(2): A(f'ds_read_b64_tr_b16 v[{F(j)+2*t}:{F(j)+2*t+1}], v3 offset:{1024*j+128*t}')
        dq.add(f'F{j}',2)
    k1=A.lab('K')
    A(f's_cmp_lg_u32 s{sX}, 0\ns_cbranch_scc1 {k1}\nbuffer_store_dwordx4 v[68:71], v0, {WS}, s{sKMO} offen sc1\n{k1}:')
    A(f'ds_read_b128 v[24:27], v5 offset:{KX-MI+2048*2}\nds_read_b128 v[40:43], v5 offset:{KX-MI+2048*2+1024}'); dq.add('K2',2)
    A(f'ds_read_b128 v[36:39], v5 offset:{KX-MI+2048*3}'); dq.add('K3a')
    def mm(j,k0,k1_):
        for D,a_ in ((S0,k0),(S1,k1_),(SM,F(j))):
            A(f'v_mfma_f32_16x16x32_bf16 v[{D}:{D+3}], v[{a_}:{a_+3}], v[{F(j)}:{F(j)+3}], '+('0' if j==0 else f'v[{D}:{D+3}]'))
    def rdA(i): A(f'ds_read_b128 v[{Areg(i)}:{Areg(i)+3}], v5 offset:{5120+1024*i}'); dq.add(f'A{i}')
    LV=[60,36,52]
    dq.wait('F0'); A('s_nop 1'); mm(0,52,56)
    A(f'ds_read_b128 v[52:55], v5 offset:{KX-MI+2048*3+1024}'); dq.add('K3b')
    rdA(0)
    dq.wait('F1'); mm(1,60,64)
    read_slot(A,dq,5,LV[0],'V0'); rdA(1)
    dq.wait('K2'); mm(2,24,40)
    rdA(2); rdA(4)
    dq.wait('K3b'); mm(3,36,52)
    TS(A,5)
    rdA(3); read_slot(A,dq,6,LV[1],'V1'); read_slot(A,dq,7,LV[2],'V2')
    vq=list(range(10))
    def vstep():
        if not vq: return
        k=vq.pop(0); i=k>>1
        dq.wait(f'A{i}'); dq.wait(f'V{k}')
        smf(DV[k&1],Areg(i),v(LV[k%3],8))
        if k+3<10: read_slot(A,dq,5+k+3,LV[k%3],f'V{k+3}')
        if k==1: A(f'ds_read_b128 v[8:11], v7 offset:{VXL-65536}'); dq.add('VX')
        if k==3: A(f'ds_read_b128 v[12:15], v7 offset:{VXL-65536+1024}'); dq.add('VX')
    vstep()
    A('v_max3_f32 v68, v28, v29, v30\nv_max3_f32 v69, v31, v32, v33\nv_max3_f32 v68, v68, v34, v35\nv_max3_f32 v69, v69, v70, v71\nv_max_f32 v68, v68, v69')
    A('v_mov_b32 v69, v68'); vstep()
    A('v_permlane16_swap_b32 v68, v69\nv_max_f32 v68, v68, v69\nv_mov_b32 v69, v68'); vstep()
    A('v_permlane32_swap_b32 v68, v69\nv_max_f32 v68, v68, v69')
    A(f'v_mul_f32 v68, s{sSC}, v68')
    for r in (28,30,32,34,70): A(f'v_pk_fma_f32 v[{r}:{r+1}], v[{r}:{r+1}], s[{sSC}:{sSC+1}], v[68:69] op_sel_hi:[1,0,0] neg_lo:[0,0,1] neg_hi:[0,0,1]')
    vstep()
    for r in (28,29,30): A(f'v_exp_f32 v{r}, v{r}')
    vstep()
    for r in (31,32): A(f'v_exp_f32 v{r}, v{r}')
    vstep()
    for r in (33,34): A(f'v_exp_f32 v{r}, v{r}')
    vstep()
    for r in (35,70): A(f'v_exp_f32 v{r}, v{r}')
    vstep()
    A('v_exp_f32 v71, v71')
    A('v_pk_add_f32 v[68:69], v[28:29], v[30:31]\nv_pk_add_f32 v[68:69], v[68:69], v[32:33]')
    vstep()
    A('v_pk_add_f32 v[68:69], v[68:69], v[34:35]\nv_pk_add_f32 v[68:69], v[68:69], v[70:71]')
    A('v_cvt_pk_bf16_f32 v28, v28, v29\nv_cvt_pk_bf16_f32 v29, v30, v31')
    vstep()
    assert not vq
    A('v_cvt_pk_bf16_f32 v30, v32, v33\nv_cvt_pk_bf16_f32 v31, v34, v35')
    A('v_cvt_pk_bf16_f32 v32, v70, v71\nv_mov_b64 v[34:35], 0\nv_add_f32 v68, v68, v69')
    dq.wait('VX')
    A('v_mfma_f32_16x16x32_bf16 v[16:19], v[8:11], v[28:31], 0\nv_mfma_f32_16x16x32_bf16 v[20:23], v[12:15], v[28:31], 0')
    A('v_mov_b32 v33, 0\nv_mov_b32 v35, v32\nv_mov_b32 v69, v68\nv_lshrrev_b32 v24, 1, v0')
    A('v_permlane16_swap_b32 v68, v69')
    A('v_pk_add_f32 v[44:45], v[44:45], v[46:47]\nv_pk_add_f32 v[48:49], v[48:49], v[50:51]')
    A('v_add_f32 v68, v68, v69\nv_cvt_pk_bf16_f32 v44, v44, v45\nv_cvt_pk_bf16_f32 v45, v48, v49\nv_mov_b32 v69, v68')
    A('v_mov_b64 v[52:53], 0')
    A('v_mfma_f32_16x16x16_bf16 v[16:19], v[44:45], v[32:33], v[16:19]\nv_mfma_f32_16x16x16_bf16 v[20:23], v[44:45], v[34:35], v[20:23]')
    A('v_permlane32_swap_b32 v68, v69\nv_add_f32 v68, v68, v69\nv_rcp_f32 v68, v68')
    k1=A.lab('K')
    A(f"""s_cmp_lg_u32 s{sX}, 1
    s_cbranch_scc1 {k1}
    s_lshr_b32 s{sT2}, s{sKVO}, 2
    s_lshl_b32 s{sT}, s{sWV}, 9
    s_add_u32 s{sT2}, s{sT2}, s{sT}
    s_add_u32 s{sT2}, s{sT2}, {VM}
    {'s_nop 0' if 'novm' in opts else f'buffer_store_dwordx2 v[44:45], v24, {WS}, s{sT2} offen sc1'}
    {k1}:""")
    for r in range(54,68,2): A(f'v_mov_b64 v[{r}:{r+1}], 0')
    A('v_mov_b64 v[36:37], 0\nv_mov_b64 v[38:39], 0')
    for r in (16,18,20,22): A(f'v_pk_mul_f32 v[{r}:{r+1}], v[{r}:{r+1}], v[68:69] op_sel_hi:[1,0]')
    A('v_cvt_pk_bf16_f32 v40, v16, v17\nv_cvt_pk_bf16_f32 v41, v18, v19\nv_cvt_pk_bf16_f32 v42, v20, v21\nv_cvt_pk_bf16_f32 v43, v22, v23')
    A('s_mov_b32 exec_lo, 0x33333333\ns_mov_b32 exec_hi, 0x33333333')
    A(f'ds_write_b64 v4, v[40:41]\nds_write_b64 v4, v[42:43] offset:1024\ns_mov_b64 exec, -1\ns_cmp_eq_u32 s{sS}, 63\ns_cbranch_scc1 RECEND')
    dq.all(); A('s_barrier')
    TS(A,6)
    A(f'ds_read_b128 v[44:47], v5 offset:{OI-MI}\nds_read_b128 v[48:51], v5 offset:{OI-MI+1024}'); dq.add('O0'); dq.add('O1')
    WD=[52,56,60,64,36]
    so=[(sPW0,0),(sPW0,2048),(sPW1,0),(sPW1,2048),(sPW2,0)]
    def wo(t,ks): A(f'{SMF} v[{WD[t]}:{WD[t]+3}], v[{44+4*ks}:{47+4*ks}], {slotreg(P_wo(ks,t))}, v1')
    def pst(t):
        d=WD[t]
        A(f'v_pk_add_f32 v[{d}:{d+1}], v[{d}:{d+1}], v[{d+2}:{d+3}]\nv_and_or_b32 v{d}, v{d}, v25, s{sTAG}')
        A(f'buffer_store_dwordx2 v[{d}:{d+1}], v24, {WS}, s{so[t][0]} offen offset:{so[t][1]}{pl}')
    A('v_mov_b32 v25, -2')
    A(f'''v_lshrrev_b32 v68, 7, v0
    v_mul_u32_u24 v68, 10240, v68
    v_and_b32 v69, 0x70, v0
    v_add_u32 v68, v68, v69
    v_bfe_u32 v69, v0, 6, 1
    v_lshlrev_b32 v69, 5, v69
    v_lshrrev_b32 v70, 9, v0
    v_lshl_add_u32 v69, v70, 4, v69
    v_bfe_u32 v70, v0, 4, 2
    v_lshl_add_u32 v69, v70, 2, v69
    s_lshl_b32 s28, s{sWV}, 6
    s_add_u32 s29, s28, {RED}
    v_add_u32 v70, s29, v69
    s_add_u32 s37, s{sBUFN}, s{sSL}
    s_add_u32 s36, s37, 10240
    s_add_u32 s37, s37, s28''')
    dq.wait('O0'); wo(0,0); dq.wait('O1'); wo(0,1); wo(1,0); wo(1,1)
    for t in range(2,5): wo(t,0); pst(t-2); wo(t,1)
    pst(3); pst(4)
    TS(A,7)
    X=[52,56,60,64]; Y=[8,12,16,20]
    def pl_(R):
        for q,so_ in zip(R,(sPR,32,33,34)): A(f'buffer_load_dwordx4 v[{q}:{q+3}], v68, {WS}, s{so_} offen sc1')
    n1=A.lab('NR'); n2=A.lab('NR')
    A(f's_cmp_ge_u32 s{sID}, 20\ns_cbranch_scc1 {n1}')
    pl_(X)
    A(f'{n1}:')
    A(f's_add_u32 s{sKVO}, s{sKVO}, {32*8192}')
    c1=A.lab('C')
    A(f"""s_and_b32 s{sT}, s{sS}, 3
    s_cmp_lg_u32 s{sT}, 2
    s_cbranch_scc1 {c1}
    s_cmp_ge_u32 s{sS}, 60
    s_cbranch_scc1 {c1}
    s_lshl_b32 s{sT2}, s{sWV}, 8
    s_add_u32 s{sT2}, s{sT2}, {SPARE+1024}
    v_lshrrev_b32 v26, 2, v0
    v_add_u32 v26, s{sT2}, v26
    ds_read_b32 v26, v26
    s_waitcnt lgkmcnt(0)
    v_cmp_eq_u32 vcc, 0, v26
    s_cbranch_vccz {c1}
    s_lshr_b32 s{sT}, s{sS}, 2
    s_lshl_b32 s{sT}, s{sT}, 8
    s_add_u32 s{sT}, s{sT}, {C_KV0+256}""")
    if 'norecwait' not in opts: poll_all(A,f's{sT}',64,15,vt=26)
    A(f'{c1}:')
    A(f"""s_lshl_b32 s{sFMP}, s{sS}, 10
    s_add_u32 s{sFMP}, s{sFMP}, s{sFM}
    s_mov_b32 s{sT}, s{sBUF}
    s_mov_b32 s{sBUF}, s{sBUFN}
    s_mov_b32 s{sBUFN}, s{sBUFR}
    s_mov_b32 s{sBUFR}, s{sT}
    s_add_u32 s{sLG}, s{sBUF}, s{sLOC}
    s_add_u32 s{sRG}, s{sBUF}, s{sREM}
    s_mov_b32 s35, s{sTAG}
    s_xor_b32 s{sTAG}, s{sTAG}, 1
    s_add_u32 s{sS}, s{sS}, 1""")
    for r in range(28,40,2): A(f'v_mov_b64 v[{r}:{r+1}], 0')
    A(f's_cmp_ge_u32 s{sID}, 20\ns_cbranch_scc1 {n2}')
    if 'ps' in opts: pl_(Y)
    A(f'{n2}:')
    for r in range(40,52,2): A(f'v_mov_b64 v[{r}:{r+1}], 0')
    A(f's_cbranch_scc1 STEP_{M}')
    def chkP(R,ok):
        for i,q in enumerate(R): A(f'v_bitop3_b32 v{24+i}, v{q}, v{q+2}, s35 bitop3:0x7e')
        A(f'v_or3_b32 v24, v24, v25, v26\nv_bitop3_b32 v24, v24, v27, 1 bitop3:0xa8\nv_cmp_ne_u32 vcc, 0, v24\ns_cbranch_vccz {ok}')
    def sumP(R):
        a_,b_,c_,d_=R
        for p,q in ((a_,b_),(c_,d_)):
            A(f'v_pk_add_f32 v[{p}:{p+1}], v[{p}:{p+1}], v[{q}:{q+1}]\nv_pk_add_f32 v[{p+2}:{p+3}], v[{p+2}:{p+3}], v[{q+2}:{q+3}]')
        A(f'v_pk_add_f32 v[24:25], v[{a_}:{a_+1}], v[{c_}:{c_+1}]\nv_pk_add_f32 v[26:27], v[{a_+2}:{a_+3}], v[{c_+2}:{c_+3}]')
    Lp=A.lab('RP'); DX=A.lab('RD'); DY=A.lab('RD'); DC=A.lab('RD')
    if 'ps' in opts:
        A(f'{Lp}:\ns_waitcnt vmcnt(4)'); chkP(X,DX); pl_(X)
        A('s_waitcnt vmcnt(4)'); chkP(Y,DY); pl_(Y)
    else:
        A(f'{Lp}:\ns_waitcnt vmcnt(0)'); chkP(X,DX); pl_(X)
    cnt(A,40)
    A(f's_add_u32 s{sCNT}, s{sCNT}, 1\ns_cmp_lt_u32 s{sCNT}, {SPIN}\ns_cbranch_scc1 {Lp}')
    abort(A,16)
    if 'ps' in opts:
        A(f'{DY}:'); sumP(Y); A(f's_branch {DC}')
    A(f'{DX}:'); sumP(X); A(f'{DC}:')
    TS(A,8)
    A('v_permlane32_swap_b32 v24, v25\nv_permlane32_swap_b32 v26, v27\nv_add_f32 v24, v24, v25\nv_add_f32 v26, v26, v27')
    A('v_permlane16_swap_b32 v24, v26\nv_add_f32 v24, v24, v26\nv_add_f32_dpp v24, v24, v24 row_ror:8 row_mask:0xf bank_mask:0xf')
    A('v_mov_b32 v25, v24\nv_permlane16_swap_b32 v24, v25\nv_cvt_pk_bf16_f32 v24, v24, v25\nv_min_u32 v24, -2, v24')
    A('s_mov_b32 exec_lo, 0xff\ns_mov_b32 exec_hi, 0xff')
    A(f'buffer_store_dword v24, v69, {WS}, s37 offen{pl}\nds_write_b32 v70, v24\ns_mov_b64 exec, -1')
    A(f's_cmp_lg_u32 s{sWV}, 0\ns_cbranch_scc1 STEP_{M}')
    Ls=A.lab('LS'); Ld=A.lab('LS')
    A(f'v_lshrrev_b32 v26, 2, v0\nv_add_u32 v71, {RED}, v26\n{Ls}:\nds_read_b32 v25, v71\ns_waitcnt lgkmcnt(0)\nv_cmp_eq_u32 vcc, -1, v25\ns_cbranch_vccz {Ld}')
    cnt(A,41)
    A(f's_add_u32 s{sCNT}, s{sCNT}, 1\ns_cmp_lt_u32 s{sCNT}, {SPIN}\ns_cbranch_scc1 {Ls}')
    abort(A,17)
    A(f'{Ld}:\nbuffer_store_dword v25, v26, {WS}, s36 offen sc1\nv_mov_b32 v27, -1\nds_write_b32 v71, v27')
    TS(A,9)
    if not RTON: TS(A,10)
    A(f's_branch STEP_{M}')
```

```python
from asmlib import *
from gen1 import *
import struct
def f32(x): return '0x%08x'%struct.unpack('<I',struct.pack('<f',x))[0]
sS=50; sH=51; sT=52; sT2=53; sT3=54; sB=55; sSC=56; sCNT=57; sFL=58; sPAR=59; sCS=60
MK=70
def wave_signal(A,soff,vt=2):
    A(f's_waitcnt vmcnt(0)\nv_mov_b32 v{vt}, 1\nv_mov_b32 v{vt+1}, 0\ns_mov_b64 exec, 1\nbuffer_store_dword v{vt}, v{vt+1}, s[{SWS}:{SWS+3}], s{soff} offen sc1\ns_mov_b64 exec, -1')
def allred(A,r,t,op):
    A(f'v_mov_b32 v{t}, v{r}\nv_permlane16_swap_b32 v{r}, v{t}\n{op} v{r}, v{r}, v{t}\nv_mov_b32 v{t}, v{r}\nv_permlane32_swap_b32 v{r}, v{t}\n{op} v{r}, v{r}, v{t}')
def attn(A,opts):
    Q=8;K=40;V=72;KMr=104;VMr=120;S00,S01,S11,SM0,SM1=128,132,136,140,144;O=160;NEG=148
    A(f'''ATT:
    s_lshr_b32 s{sS}, s{sID}, 3
    s_and_b32 s{sH}, s{sID}, 7
    s_lshl_b32 s{sH}, s{sH}, 2
    s_add_u32 s{sH}, s{sH}, s{sWV}
    v_lshlrev_b32 v1, 4, v0
    v_and_b32 v2, 15, v0
    v_lshrrev_b32 v3, 4, v0
    v_lshlrev_b32 v3, 2, v3
    s_mov_b32 s{sSC}, 0x3e0293ee
    v_mov_b32 v{NEG}, {f32(-1e9*128**0.5)}''')
    A(f'''s_lshl_b32 s28, s{sWV}, 12
    v_lshlrev_b32 v4, 5, v2
    v_lshl_add_u32 v4, v3, 1, v4
    v_add_u32 v154, s28, v4
    v_bfe_u32 v4, v0, 2, 2
    v_lshl_add_u32 v4, v3, 1, v4
    v_lshlrev_b32 v4, 5, v4
    v_and_b32 v5, 3, v0
    v_lshl_add_u32 v4, v5, 3, v4
    v_add_u32 v155, s28, v4''')
    for i in range(4): A(f'v_add_u32 v4, {i}, v3\nv_cmp_le_u32 s[{MK+2*i}:{MK+2*i+1}], v4, v2')
    A('ATL:')
    A(f's_lshr_b32 s{sT}, s{sS}, 2\ns_lshl_b32 s{sT}, s{sT}, 7\ns_add_u32 s{sT2}, s{sT}, {C_Q0}\ns_lshl_b32 s{sT}, s{sT}, 1\ns_add_u32 s{sT}, s{sT}, {C_KV0}')
    poll_all(A,f's{sT2}',32,20); poll_all(A,f's{sT}',64,21)
    A(f's_lshl_b32 s{sB}, s{sS}, 5\ns_add_u32 s{sB}, s{sB}, s{sH}\ns_lshl_b32 s{sT3}, s{sB}, 13')
    for base,r in ((QF,Q),(KF,K),(VF,V)):
        A(f's_add_u32 s{sT}, s{sT3}, {base}\ns_add_u32 s{sT2}, s{sT}, 4096')
        for i in range(8): A(f'buffer_load_dwordx4 v[{r+4*i}:{r+4*i+3}], v1, s[{SWS}:{SWS+3}], s{sT if i<4 else sT2} offen offset:{1024*(i&3)} sc1')
    A('s_waitcnt vmcnt(8)')
    fr=lambda b,j,t: v(b+4*(2*j+t),4)
    for j in range(4):
        for D,kt,qt in ((S00,0,0),(S01,0,1),(S11,1,1)):
            A(f'v_mfma_f32_16x16x32_bf16 v[{D}:{D+3}], {fr(K,j,kt)}, {fr(Q,j,qt)}, '+('0' if j==0 else f'v[{D}:{D+3}]'))
    L=A.lab('AF'); D=A.lab('AD')
    A(f'''s_lshl_b32 s{sFL}, s{sB}, 5
    s_add_u32 s{sFL}, s{sFL}, {F_M}
    v_and_b32 v2, 7, v0
    v_lshlrev_b32 v2, 2, v2
    s_mov_b32 s{sCNT}, 0
    {L}:
    buffer_load_dword v3, v2, s[{SWS}:{SWS+3}], s{sFL} offen sc1
    s_waitcnt vmcnt(0)
    v_cmp_eq_u32 vcc, 0, v3
    s_cbranch_vccz {D}
    s_add_u32 s{sCNT}, s{sCNT}, 1
    s_cmp_lt_u32 s{sCNT}, {SPIN}
    s_cbranch_scc1 {L}''')
    abort(A,22)
    A(f'''{D}:
    s_lshl_b32 s{sT}, s{sB}, 12
    s_add_u32 s{sT}, s{sT}, {KM}
    s_lshl_b32 s{sT2}, s{sB}, 11
    s_add_u32 s{sT2}, s{sT2}, {VM}
    v_lshlrev_b32 v2, 3, v0''')
    KT=O
    for j in range(4): A(f'buffer_load_dwordx4 v[{KT+4*j}:{KT+4*j+3}], v1, s[{SWS}:{SWS+3}], s{sT} offen offset:{1024*j} sc1')
    for w in range(4): A(f'buffer_load_dwordx2 v[{VMr+2*w}:{VMr+2*w+1}], v2, s[{SWS}:{SWS+3}], s{sT2} offen offset:{512*w} sc1')
    for i in range(4):
        A(f'v_cndmask_b32 v{S00+i}, v{NEG}, v{S00+i}, s[{MK+2*i}:{MK+2*i+1}]\nv_cndmask_b32 v{S11+i}, v{NEG}, v{S11+i}, s[{MK+2*i}:{MK+2*i+1}]')
    for w in range(4):
        A(f's_waitcnt vmcnt({7-w})')
        for u in range(2): A(f'ds_write_b64 v154, v[{KT+4*w+2*u}:{KT+4*w+2*u+1}] offset:{512*w+2048*u}')
    A('s_waitcnt lgkmcnt(0)')
    for j in range(4):
        for t in range(2): A(f'ds_read_b64_tr_b16 v[{KMr+4*j+2*t}:{KMr+4*j+2*t+1}], v155 offset:{1024*j+128*t}')
    for j in range(4):
        A(f's_waitcnt lgkmcnt({6-2*j})')
        for D_,qt in ((SM0,0),(SM1,1)):
            A(f'v_mfma_f32_16x16x32_bf16 v[{D_}:{D_+3}], v[{KMr+4*j}:{KMr+4*j+3}], {fr(Q,j,qt)}, '+('0' if j==0 else f'v[{D_}:{D_+3}]'))
    m0,m1,t0,t1=150,151,152,153
    A(f'v_max3_f32 v{m0}, v{S00}, v{S00+1}, v{S00+2}\nv_max3_f32 v{m1}, v{S01}, v{S01+1}, v{S01+2}\nv_max3_f32 v{t0}, v{S01+3}, v{S11}, v{S11+1}\nv_max3_f32 v{m1}, v{m1}, v{S11+2}, v{S11+3}')
    A(f'v_max_f32 v{m0}, v{m0}, v{S00+3}\nv_max_f32 v{m1}, v{m1}, v{t0}')
    A(f'v_max3_f32 v{m0}, v{m0}, v{SM0+2}, v{SM0+3}\nv_max3_f32 v{m1}, v{m1}, v{SM1+2}, v{SM1+3}')
    allred(A,m0,t0,'v_max_f32'); allred(A,m1,t1,'v_max_f32')
    A(f'v_mul_f32 v{m0}, s{sSC}, v{m0}\nv_mul_f32 v{m1}, s{sSC}, v{m1}')
    r0=[S00+i for i in range(4)]+[SM0+2,SM0+3]; r1=[S01+i for i in range(4)]+[S11+i for i in range(4)]+[SM1+2,SM1+3]
    for r in r0: A(f'v_fma_f32 v{r}, v{r}, s{sSC}, -v{m0}')
    for r in r1: A(f'v_fma_f32 v{r}, v{r}, s{sSC}, -v{m1}')
    for r in r0+r1: A(f'v_exp_f32 v{r}, v{r}')
    def ssum(d,rs):
        A(f'v_add_f32 v{d}, v{rs[0]}, v{rs[1]}')
        for r in rs[2:]: A(f'v_add_f32 v{d}, v{d}, v{r}')
    ssum(m0,r0); ssum(m1,r1)
    P0,P1,PM0,PM1=224,228,232,236
    A(f'''v_cvt_pk_bf16_f32 v{P0}, v{S00}, v{S00+1}
    v_cvt_pk_bf16_f32 v{P0+1}, v{S00+2}, v{S00+3}
    v_mov_b32 v{P0+2}, 0
    v_mov_b32 v{P0+3}, 0
    v_cvt_pk_bf16_f32 v{P1}, v{S01}, v{S01+1}
    v_cvt_pk_bf16_f32 v{P1+1}, v{S01+2}, v{S01+3}
    v_cvt_pk_bf16_f32 v{P1+2}, v{S11}, v{S11+1}
    v_cvt_pk_bf16_f32 v{P1+3}, v{S11+2}, v{S11+3}
    v_cvt_pk_bf16_f32 v{PM0}, v{SM0+2}, v{SM0+3}
    v_mov_b32 v{PM0+1}, 0
    v_mov_b32 v{PM0+2}, 0
    v_mov_b32 v{PM0+3}, v{PM0}
    v_cvt_pk_bf16_f32 v{PM1}, v{SM1+2}, v{SM1+3}
    v_mov_b32 v{PM1+1}, 0
    v_mov_b32 v{PM1+2}, 0
    v_mov_b32 v{PM1+3}, v{PM1}''')
    for et in range(8):
        for qt,P in ((0,P0),(1,P1)):
            d=O+4*(2*et+qt); A(f'v_mfma_f32_16x16x32_bf16 v[{d}:{d+3}], v[{V+4*et}:{V+4*et+3}], v[{P}:{P+3}], 0')
    allred(A,m0,t0,'v_add_f32'); allred(A,m1,t1,'v_add_f32')
    A(f'v_rcp_f32 v{m0}, v{m0}\nv_rcp_f32 v{m1}, v{m1}\ns_waitcnt vmcnt(0)')
    for et in range(8):
        u,w=et>>2,et&3
        for qt,P in ((0,PM0),(1,PM1)):
            d=O+4*(2*et+qt); A(f'v_mfma_f32_16x16x16_bf16 v[{d}:{d+3}], v[{VMr+2*w}:{VMr+2*w+1}], v[{P+2*u}:{P+2*u+1}], v[{d}:{d+3}]')
    A(f'''s_lshl_b32 s{sT}, s{sS}, 18
    s_lshl_b32 s{sT2}, s{sH}, 13
    s_add_u32 s{sT}, s{sT}, s{sT2}
    s_add_u32 s{sT}, s{sT}, {OF}
    s_add_u32 s{sT2}, s{sT}, 4096''')
    for et in range(8):
        d=O+8*et; R=8+4*et
        for i in range(4): A(f'v_mul_f32 v{d+i}, v{d+i}, v{m0}\nv_mul_f32 v{d+4+i}, v{d+4+i}, v{m1}')
        A(f'v_cvt_pk_bf16_f32 v{R}, v{d}, v{d+1}\nv_cvt_pk_bf16_f32 v{R+1}, v{d+2}, v{d+3}\nv_cvt_pk_bf16_f32 v{R+2}, v{d+4}, v{d+5}\nv_cvt_pk_bf16_f32 v{R+3}, v{d+6}, v{d+7}')
        A(f'v_permlane16_swap_b32 v{R}, v{R+2}\nv_permlane16_swap_b32 v{R+1}, v{R+3}')
        A(f'buffer_store_dwordx4 v[{R}:{R+3}], v1, s[{SWS}:{SWS+3}], s{sT if et<4 else sT2} offen offset:{1024*(et&3)} sc1')
    A(f's_lshl_b32 s{sT}, s{sS}, 7\ns_add_u32 s{sT}, s{sT}, {C_O0}\ns_lshl_b32 s{sT2}, s{sH}, 2\ns_add_u32 s{sT}, s{sT}, s{sT2}')
    wave_signal(A,sT)
    A(f's_add_u32 s{sS}, s{sS}, 8\ns_cmp_lt_u32 s{sS}, 64\ns_cbranch_scc1 ATL\ns_waitcnt vmcnt(0)')
    stamp(A,26,2)
    A('s_waitcnt vmcnt(0)\ns_endpgm')
def wo(A,opts):
    RING=16; NR=56; ACC=240
    A(f'''WO:
    s_sub_u32 s28, s{sID}, 64
    s_mul_i32 s{sS}, s28, 3277
    s_lshr_b32 s{sS}, s{sS}, 16
    s_mul_i32 s29, s{sS}, 20
    s_sub_u32 s{sCS}, s28, s29''')
    srd(A,SA,40,5242880); srd(A,SB,0,2621440); srd(A,SD,88,2621440)
    A(f'''v_lshrrev_b32 v2, 2, v0
    v_mul_u32_u24 v2, 1280, v2
    v_and_b32 v3, 3, v0
    v_lshl_add_u32 v2, v3, 4, v2
    s_mul_i32 s{sT}, s{sWV}, {1024*1280}
    s_lshl_b32 s{sT2}, s{sCS}, 6
    s_add_u32 s{sT}, s{sT}, s{sT2}
    s_lshl_b32 s{sT2}, s{sWV}, 15
    v_lshrrev_b32 v4, 5, v0
    v_lshlrev_b32 v4, 3, v4
    v_bfe_u32 v5, v0, 2, 2
    v_add_u32 v4, v4, v5
    v_lshlrev_b32 v4, 6, v4
    v_bfe_u32 v5, v0, 4, 1
    v_lshl_add_u32 v4, v5, 5, v4
    v_lshl_add_u32 v4, v3, 3, v4
    v_add_u32 v4, s{sT2}, v4''')
    for half in range(2):
        A(f's_mov_b32 m0, s{sT2}')
        for i in range(32):
            A(f'buffer_load_dwordx4 v2, s[{SA}:{SA+3}], s{sT} offen lds\ns_add_u32 s{sT}, s{sT}, {16*1280}')
            if i<31: A('s_add_u32 m0, m0, 1024')
        A('s_waitcnt vmcnt(0)')
        for i in range(32):
            for t in range(2):
                r=4*(32*half+i)+2*t
                A(f'ds_read_b64_tr_b16 a[{r}:{r+1}], v4 offset:{1024*i+256*t}')
            if i%4==3: A('s_waitcnt lgkmcnt(4)')
        A('s_waitcnt lgkmcnt(0)')
    A(f'''s_barrier
    v_lshlrev_b32 v1, 4, v0
    v_and_b32 v2, 31, v0
    v_mul_u32_u24 v2, 1280, v2
    v_lshrrev_b32 v3, 5, v0
    v_lshl_add_u32 v2, v3, 3, v2
    s_lshl_b32 s{sT}, s{sWV}, 4
    s_lshl_b32 s{sT2}, s{sCS}, 6
    s_add_u32 s{sT}, s{sT}, s{sT2}
    v_add_u32 v8, s{sT}, v2
    s_mov_b32 s{sPAR}, 0''')
    stamp(A,27,2)
    A('WOL:')
    A(f's_lshr_b32 s{sT}, s{sS}, 2\ns_lshl_b32 s{sT}, s{sT}, 7\ns_add_u32 s{sT}, s{sT}, {C_G0}')
    poll_all(A,f's{sT}',5,23)
    A(f's_mul_i32 s{sB}, s{sS}, {32*1280}\ns_add_u32 s{sT}, s{sB}, {GB}')
    A(f'buffer_load_dwordx2 v[4:5], v8, s[{SB}:{SB+3}], s{sB} offen\nbuffer_load_dwordx2 v[6:7], v8, s[{SWS}:{SWS+3}], s{sT} offen sc1')
    A(f's_lshl_b32 s{sT}, s{sS}, 7\ns_add_u32 s{sT}, s{sT}, {C_O0}')
    poll_all(A,f's{sT}',32,24)
    A(f's_lshl_b32 s{sT}, s{sS}, 18\ns_lshl_b32 s{sT2}, s{sWV}, 16\ns_add_u32 s{sT}, s{sT}, s{sT2}\ns_add_u32 s{sT}, s{sT}, {OF}')
    def ld(i):
        sl=RING+4*(i%NR)
        A(f'buffer_load_dwordx4 v[{sl}:{sl+3}], v1, s[{SWS}:{SWS+3}], s{sT} offen offset:{1024*(i&3)} sc1')
        if i&3==3: A(f's_add_u32 s{sT}, s{sT}, 4096')
    for i in range(NR): ld(i)
    for i in range(64):
        A(f's_waitcnt vmcnt({NR-1 if i<64-NR else 63-i})')
        sl=RING+4*(i%NR)
        A(f'v_mfma_f32_32x32x16_bf16 v[{ACC}:{ACC+15}], a[{4*i}:{4*i+3}], v[{sl}:{sl+3}], '+('0' if i==0 else f'v[{ACC}:{ACC+15}]'))
        if i<64-NR: ld(NR+i)
    A(f's_lshl_b32 s{sT}, s{sWV}, 12\ns_add_u32 s{sT}, s{sT}, s{sPAR}\nv_add_u32 v9, s{sT}, v1')
    for q in range(4): A(f'ds_write_b128 v9, v[{ACC+4*q}:{ACC+4*q+3}] offset:{1024*q}')
    A(f's_lshl_b32 s{sT}, s{sWV}, 10\ns_add_u32 s{sT}, s{sT}, s{sPAR}\nv_add_u32 v9, s{sT}, v1\ns_waitcnt lgkmcnt(0)\ns_barrier')
    for w in range(4): A(f'ds_read_b128 v[{16+4*w}:{19+4*w}], v9 offset:{4096*w}')
    unpack(A,32,4,2); unpack(A,36,6,2)
    A('s_waitcnt lgkmcnt(0)')
    for i in range(4): A(f'v_add_f32 v{16+i}, v{16+i}, v{20+i}\nv_add_f32 v{24+i}, v{24+i}, v{28+i}')
    for i in range(4): A(f'v_add_f32 v{16+i}, v{16+i}, v{24+i}')
    A('v_cvt_pk_bf16_f32 v20, v16, v17\nv_cvt_pk_bf16_f32 v21, v18, v19'); unpack(A,16,20,2)
    for i in range(4): A(f'v_mul_f32 v{16+i}, v{16+i}, v{36+i}')
    A('v_cvt_pk_bf16_f32 v20, v16, v17\nv_cvt_pk_bf16_f32 v21, v18, v19'); unpack(A,16,20,2)
    for i in range(4): A(f'v_add_f32 v{16+i}, v{16+i}, v{32+i}')
    A('v_cvt_pk_bf16_f32 v20, v16, v17\nv_cvt_pk_bf16_f32 v21, v18, v19')
    A(f'buffer_store_dwordx2 v[20:21], v8, s[{SD}:{SD+3}], s{sB} offen')
    A(f's_xor_b32 s{sPAR}, s{sPAR}, 16384\ns_add_u32 s{sS}, s{sS}, 6\ns_cmp_lt_u32 s{sS}, 64\ns_cbranch_scc1 WOL\ns_waitcnt vmcnt(0)')
    stamp(A,28,2)
    A('s_waitcnt vmcnt(0)\ns_endpgm')
def worker3(A,opts):
    A(f's_cmp_lt_u32 s{sID}, 64\ns_cbranch_scc1 ATT\ns_cmp_lt_u32 s{sID}, 184\ns_cbranch_scc1 WO\ns_endpgm')
    attn(A,opts); wo(A,opts)
```

```python
from asmlib import *
KN='recurrent_scan__memory_aug_recurrent_mem_tr__swiglu_ffn__prompt'
C_LN=0
C_KV0=0x400; C_Q0=0x1400; C_H0=0x1c00; C_G0=0x2400; C_O0=0x2c00
STAMP=0x31000; GO=0x32000
F_M=0x8000
MEMB=0x20000; PBUF=0x40000; XN=0x100000; KF=0x400000; VF=0x1400000; QF=0x2400000
HB=0x3400000; GB=0x3B00000; KM=0x3E00000; VM=0x4600000; OF=0x4A00000
SPIN=1<<17
SWS=4; SA=8; SB=12; SC=16; SD=20
sWV=24; sID=25; sX=26; sMODE=27
def srd(A,base,arg,nbytes):
    A(f's_load_dwordx2 s[{base}:{base+1}], s[0:1], {arg}\ns_waitcnt lgkmcnt(0)\ns_mov_b32 s{base+2}, {nbytes}\ns_mov_b32 s{base+3}, 0x20000')
def abort(A,code):
    A(f'v_mov_b32 v2, {code}\nv_mov_b32 v3, {STAMP+160}\nbuffer_store_dword v2, v3, s[{SWS}:{SWS+3}], 0 offen sc1\ns_waitcnt vmcnt(0)\ns_endpgm')
def poll_ge(A,soff,target,code,vt=2,st=28):
    L=A.lab('PL'); D=A.lab('PD')
    if isinstance(soff,int): A(f'v_mov_b32 v{vt+1}, {soff}\ns_mov_b32 s{st}, 0'); soff=0
    else: A(f'v_mov_b32 v{vt+1}, 0\ns_mov_b32 s{st}, 0')
    A(f'{L}:')
    A(f'buffer_load_dword v{vt}, v{vt+1}, s[{SWS}:{SWS+3}], {soff} offen sc1\ns_waitcnt vmcnt(0)\nv_readfirstlane_b32 s{st+1}, v{vt}')
    A(f's_cmp_ge_u32 s{st+1}, {target}\ns_cbranch_scc1 {D}\ns_add_u32 s{st}, s{st}, 1\ns_cmp_lt_u32 s{st}, {SPIN}\ns_cbranch_scc1 {L}')
    abort(A,code)
    A(f'{D}:')
def poll_all(A,soff,n,code,vt=2,st=28):
    L=A.lab('PL'); D=A.lab('PD')
    A(f'v_mbcnt_lo_u32_b32 v{vt+1}, -1, 0\nv_mbcnt_hi_u32_b32 v{vt+1}, -1, v{vt+1}')
    if n==192: A(f'v_min_u32 v{vt+1}, 47, v{vt+1}\nv_lshlrev_b32 v{vt+1}, 4, v{vt+1}')
    else:
        if n<64: A(f'v_min_u32 v{vt+1}, {n-1}, v{vt+1}')
        A(f'v_lshlrev_b32 v{vt+1}, 2, v{vt+1}')
    if isinstance(soff,int):
        if soff: A(f'v_add_u32 v{vt+1}, {soff}, v{vt+1}')
        soff=0
    A(f's_mov_b32 s{st}, 0\n{L}:')
    if n==192:
        A(f'buffer_load_dwordx4 v[{vt+2}:{vt+5}], v{vt+1}, s[{SWS}:{SWS+3}], {soff} offen sc1\ns_waitcnt vmcnt(0)\nv_min_u32 v{vt}, v{vt+2}, v{vt+3}\nv_min3_u32 v{vt}, v{vt}, v{vt+4}, v{vt+5}')
    else:
        A(f'buffer_load_dword v{vt}, v{vt+1}, s[{SWS}:{SWS+3}], {soff} offen sc1\ns_waitcnt vmcnt(0)')
    A(f'v_cmp_eq_u32 vcc, 0, v{vt}\ns_cbranch_vccz {D}\ns_add_u32 s{st}, s{st}, 1\ns_cmp_lt_u32 s{st}, {SPIN}\ns_cbranch_scc1 {L}')
    abort(A,code)
    A(f'{D}:')
def arr2_issue(A,vt,SC=SC,build=True):
    if build: srd(A,SC,96,256)
    A(f'v_mov_b32 v{vt}, 1\nv_mov_b32 v{vt+1}, 64\ns_mov_b64 exec, 1\nbuffer_atomic_add v{vt}, v{vt+1}, s[{SC}:{SC+3}], 0 offen sc0\ns_mov_b64 exec, -1')
def arr2_last(A,vt,SC=SC):
    L=A.lab('A2')
    A(f'v_readfirstlane_b32 s30, v{vt}\ns_cmp_lg_u32 s30, 255\ns_cbranch_scc1 {L}\nv_mov_b32 v{vt}, 1\nv_mov_b32 v{vt+1}, 136\ns_mov_b64 exec, 1\nbuffer_store_dword v{vt}, v{vt+1}, s[{SC}:{SC+3}], 0 offen sc1\nv_mov_b32 v{vt}, 0\nv_mov_b32 v{vt+1}, 64\nbuffer_store_dword v{vt}, v{vt+1}, s[{SC}:{SC+3}], 0 offen sc1\ns_mov_b64 exec, -1\n{L}:')
def go2_wait(A,vt,code,SC=SC):
    L=A.lab('G2'); D=A.lab('G2')
    A(f'v_mov_b32 v{vt+1}, 136\ns_mov_b32 s31, 0\n{L}:\nbuffer_load_dword v{vt}, v{vt+1}, s[{SC}:{SC+3}], 0 offen sc1\ns_waitcnt vmcnt(0)\nv_readfirstlane_b32 s30, v{vt}\ns_cmp_lg_u32 s30, 0\ns_cbranch_scc1 {D}\ns_add_u32 s31, s31, 1\ns_cmp_lt_u32 s31, {SPIN}\ns_cbranch_scc1 {L}')
    abort(A,code)
    A(f'{D}:')
def signal(A,soff,vt=2):
    L=A.lab('SG')
    A(f's_waitcnt vmcnt(0)\ns_barrier\ns_cmp_lg_u32 s{sWV}, 0\ns_cbranch_scc1 {L}')
    if isinstance(soff,int): A(f'v_mov_b32 v{vt+1}, {soff}'); soff=0
    else: A(f'v_mov_b32 v{vt+1}, 0')
    A(f'v_mov_b32 v{vt}, 1\ns_mov_b64 exec, 1\nbuffer_store_dword v{vt}, v{vt+1}, s[{SWS}:{SWS+3}], {soff} offen sc1\ns_mov_b64 exec, -1')
    A(f'{L}:')
TR=False; TRD=False
DMAP={16:2,17:3,18:4,19:5,20:6,21:7,22:8,24:9,25:10,26:11,27:12,28:13,29:14,30:15}
def stamp(A,slot,vt=2,cond=None):
    if not TR: return
    if TRD and slot not in DMAP: return
    L=A.lab('ST')
    for r,val in (cond or []): A(f's_cmp_lg_u32 s{r}, {val}\ns_cbranch_scc1 {L}')
    A(f's_load_dwordx2 s[92:93], s[0:1], {96 if TRD else 104}\ns_memrealtime s[90:91]\ns_waitcnt lgkmcnt(0)\ns_mov_b32 s94, {256 if TRD else 0x100000}\ns_mov_b32 s95, 0x20000')
    A(f'v_mov_b32 v{vt}, s90\nv_mov_b32 v{vt+1}, {4*DMAP[slot] if TRD else STAMP+4*slot}\ns_mov_b64 s[96:97], exec\ns_mov_b64 exec, 1\nbuffer_atomic_umax v{vt}, v{vt+1}, s[92:95], 0 offen\ns_mov_b64 exec, s[96:97]\n{L}:')
def prologue(A,opts=()):
    A(f'''s_cmp_ge_u32 s2, 256
    s_cbranch_scc1 KEND
    v_lshrrev_b32 v1, 6, v0
    s_nop 0
    v_readfirstlane_b32 s{sWV}, v1''')
    stamp(A,16,2,[(2,0),(sWV,0)])
    A(f'''s_load_dwordx2 s[{SWS}:{SWS+1}], s[0:1], 104
    s_load_dwordx2 s[{SC}:{SC+1}], s[0:1], 96
    s_load_dwordx2 s[{SA}:{SA+1}], s[0:1], 8
    s_mov_b32 s{SWS+2}, 0x10000000
    s_mov_b32 s{SWS+3}, 0x20000
    s_mov_b32 s{SC+2}, 256
    s_mov_b32 s{SC+3}, 0x20000
    s_mov_b32 s{SA+2}, 10240
    s_mov_b32 s{SA+3}, 0x20000
    s_getreg_b32 s28, hwreg(HW_REG_XCC_ID,0,4)
    s_min_u32 s28, s28, 8
    s_mul_i32 s34, s28, 7
    s_lshl_b64 s[36:37], 1, s34
    v_mov_b32 v12, s36
    v_mov_b32 v13, s37
    v_mov_b32 v14, 0
    v_mov_b32 v4, -1
    v_mov_b32 v5, -1
    v_mov_b32 v6, -1
    v_mov_b32 v7, -1
    v_mov_b32 v8, 0
    v_mov_b32 v9, 0
    v_mov_b32 v10, 0
    v_mov_b32 v11, 0
    v_lshlrev_b32 v2, 4, v0
    s_mul_i32 s35, s2, 2560
    s_add_u32 s35, s35, {PBUF}
    s_mul_i32 s29, s2, 384
    s_mul_i32 s30, s2, 160
    s_add_u32 s30, s30, {MEMB+20480}
    s_waitcnt lgkmcnt(0)
    s_cmp_lg_u32 s{sWV}, 0
    s_cbranch_scc1 PRO_NA
    s_mov_b64 exec, 1
    buffer_atomic_add_x2 v[12:13], v14, s[{SC}:{SC+3}], 0 offen sc0
    s_mov_b64 exec, -1
    PRO_NA:
    v_cmp_gt_u32 vcc, 160, v0
    s_and_saveexec_b64 s[32:33], vcc
    buffer_store_dwordx4 v[4:7], v2, s[{SWS}:{SWS+3}], s35 offen sc1
    v_cmp_gt_u32 vcc, 24, v0
    s_and_b64 exec, exec, vcc
    buffer_store_dwordx4 v[8:11], v2, s[{SWS}:{SWS+3}], s29 offen sc1
    v_cmp_gt_u32 vcc, 10, v0
    s_and_b64 exec, exec, vcc
    buffer_store_dwordx4 v[4:7], v2, s[{SWS}:{SWS+3}], s30 offen sc1
    s_mov_b64 exec, s[32:33]
    s_cmp_ge_u32 s2, 10
    s_cbranch_scc1 PRO_NOMEM
    s_cmp_lg_u32 s{sWV}, 3
    s_cbranch_scc1 PRO_NOMEM
    v_and_b32 v15, 63, v0
    v_bfe_u32 v3, v15, 2, 2
    v_and_b32 v12, 1, v15
    v_lshl_add_u32 v12, v3, 1, v12
    v_mul_u32_u24 v12, 1280, v12
    v_bfe_u32 v3, v15, 1, 1
    v_lshl_add_u32 v12, v3, 4, v12
    v_lshrrev_b32 v3, 4, v15
    v_lshl_add_u32 v12, v3, 5, v12
    s_lshl_b32 s29, s2, 7
    buffer_load_dwordx4 v[16:19], v12, s[{SA}:{SA+3}], s29 offen
    s_lshl_b32 s30, s2, 10
    s_add_u32 s30, s30, {MEMB}
    s_add_u32 s29, s30, 10240
    v_lshlrev_b32 v3, 4, v15
    s_waitcnt vmcnt(0)
    v_min_u32 v16, -2, v16
    v_min_u32 v17, -2, v17
    v_min_u32 v18, -2, v18
    v_min_u32 v19, -2, v19
    buffer_store_dwordx4 v[16:19], v3, s[{SWS}:{SWS+3}], s30 offen sc1
    buffer_store_dwordx4 v[16:19], v3, s[{SWS}:{SWS+3}], s29 offen sc1
    PRO_NOMEM:
    ''')
    stamp(A,30,2,[(sWV,0)])
    A(f'''s_cmp_lg_u32 s{sWV}, 0
    s_cbranch_scc1 PRO_W
    s_waitcnt vmcnt(3)
    v_readfirstlane_b32 s32, v12
    v_readfirstlane_b32 s33, v13
    s_lshr_b64 s[30:31], s[32:33], s34
    s_and_b32 s29, s30, 127
    s_add_u32 s32, s32, s36
    s_addc_u32 s33, s33, s37
    s_mov_b32 s36, s29
    s_mov_b32 s37, 0''')
    for j in range(9): A(f's_lshr_b64 s[34:35], s[32:33], {7*j}\ns_and_b32 s34, s34, 127\ns_add_u32 s37, s37, s34')
    A(f'''s_cmp_lg_u32 s37, 256
    s_cbranch_scc1 PRO_P
    s_or_b32 s33, s33, 0x80000000
    v_mov_b32 v4, s32
    v_mov_b32 v5, s33
    v_mov_b32 v2, 0
    s_mov_b64 exec, 1
    buffer_store_dwordx2 v[4:5], v2, s[{SC}:{SC+3}], 0 offen offset:128 sc1
    v_mov_b32 v4, 0
    v_mov_b32 v5, 0
    buffer_store_dwordx2 v[4:5], v2, s[{SC}:{SC+3}], 0 offen sc1
    s_mov_b64 exec, -1
    s_branch PRO_D
    PRO_P:
    s_mov_b32 s30, 0
    v_mov_b32 v2, 0
    PRO_L:
    buffer_load_dwordx2 v[4:5], v2, s[{SC}:{SC+3}], 0 offen offset:128 sc1
    s_waitcnt vmcnt(0)
    v_readfirstlane_b32 s32, v4
    v_readfirstlane_b32 s33, v5
    s_cmp_lt_i32 s33, 0
    s_cbranch_scc1 PRO_D
    s_add_u32 s30, s30, 1
    s_cmp_lt_u32 s30, {SPIN}
    s_cbranch_scc1 PRO_L''')
    abort(A,1)
    A(f'''PRO_D:
    v_mov_b32 v4, s32
    v_mov_b32 v5, s33
    v_mov_b32 v6, s36
    v_mov_b32 v3, 0
    ds_write_b64 v3, v[4:5]
    ds_write_b32 v3, v6 offset:8
    s_waitcnt lgkmcnt(0)
    PRO_W:
    s_barrier
    v_mov_b32 v3, 0
    ds_read_b64 v[4:5], v3
    ds_read_b32 v6, v3 offset:8
    s_waitcnt lgkmcnt(0)
    v_readfirstlane_b32 s48, v4
    v_readfirstlane_b32 s49, v5
    v_readfirstlane_b32 s29, v6
    s_and_b32 s49, s49, 0x7fffffff''')
    for j in range(9): A(f's_lshr_b64 s[30:31], s[48:49], {7*j}\ns_and_b32 s{32+j}, s30, 127')
    for j in range(9,16): A(f's_mov_b32 s{32+j}, 0')
    A('s_barrier\ns_mov_b32 s30, -1\ns_mov_b32 s31, -1')
    for j in range(8):
        n=A.lab('R'); b=A.lab('R')
        A(f'''s_cmp_lt_u32 s{32+j}, 32
        s_cbranch_scc1 {n}
        s_cmp_eq_i32 s30, -1
        s_cbranch_scc0 {b}
        s_mov_b32 s30, {j}
        s_branch {n}
        {b}:
        s_cmp_eq_i32 s31, -1
        s_cbranch_scc0 {n}
        s_mov_b32 s31, {j}
        {n}:''')
    A(f'''s_mov_b32 s{sMODE}, 1
    s_cmp_eq_i32 s31, -1
    s_cbranch_scc0 PRO_F
    s_mov_b32 s{sMODE}, 0
    s_mov_b32 s30, -2
    s_mov_b32 s31, -2
    PRO_F:
    s_mov_b32 s48, 0''')
    for j in range(9):
        n=A.lab('R'); b=A.lab('R')
        A(f'''s_cmp_le_u32 s28, {j}
        s_cbranch_scc1 {n}
        s_add_u32 s48, s48, s{32+j}
        s_cmp_eq_u32 s30, {j}
        s_cbranch_scc1 {b}
        s_cmp_eq_u32 s31, {j}
        s_cbranch_scc0 {n}
        {b}:
        s_sub_u32 s48, s48, 32
        {n}:''')
    A(f'''s_add_u32 s48, s48, s29
    s_cmp_eq_u32 s{sMODE}, 0
    s_cbranch_scc1 PRO_SLOW
    s_mov_b32 s{sX}, 0
    s_cmp_eq_u32 s28, s30
    s_cbranch_scc1 PRO_CAND
    s_mov_b32 s{sX}, 1
    s_cmp_eq_u32 s28, s31
    s_cbranch_scc1 PRO_CAND
    s_mov_b32 s{sID}, s48
    s_branch WORKER
    PRO_CAND:
    s_mov_b32 s{sID}, s29
    s_cmp_lt_u32 s29, 32
    s_cbranch_scc1 REC
    s_sub_u32 s{sID}, s48, 32
    s_branch WORKER
    PRO_SLOW:
    s_lshr_b32 s{sX}, s48, 5
    s_and_b32 s{sID}, s48, 31
    s_cmp_lt_u32 s48, 64
    s_cbranch_scc1 REC
    s_sub_u32 s{sID}, s48, 64
    s_branch WORKER''')
def unpack(A,dst,src,n):
    for i in range(n):
        A(f'v_lshlrev_b32 v{dst+2*i}, 16, v{src+i}\nv_and_b32 v{dst+2*i+1}, 0xffff0000, v{src+i}')
def row_allreduce(A,r,op='v_add_f32'):
    for k in (8,4,2,1): A(f'{op}_dpp v{r}, v{r}, v{r} row_ror:{k} row_mask:0xf bank_mask:0xf')
def ln_stage(A):
    E=A.lab('LNE')
    srd(A,SA,0,2621440)
    A(f'''s_lshl_b32 s28, s{sID}, 2
    s_add_u32 s28, s28, s{sWV}
    s_cmp_ge_u32 s28, 512
    s_cbranch_scc1 {E}
    v_lshrrev_b32 v2, 4, v0
    v_mul_u32_u24 v2, 1280, v2
    v_and_b32 v3, 15, v0
    v_lshl_add_u32 v2, v3, 4, v2
    s_mul_i32 s29, s28, 5120
    s_add_u32 s30, s29, {XN}''')
    for p in range(5): A(f'buffer_load_dwordx4 v[{4+4*p}:{7+4*p}], v2, s[{SA}:{SA+3}], s29 offen offset:{256*p}')
    A('s_waitcnt vmcnt(0)')
    unpack(A,24,4,20)
    A('v_add_f32 v3, v24, v25')
    for i in range(26,64): A(f'v_add_f32 v3, v3, v{i}')
    row_allreduce(A,3)
    A('v_mul_f32 v3, 0x3acccccd, v3')
    for i in range(24,64): A(f'v_sub_f32 v{i}, v{i}, v3')
    A('v_mul_f32 v3, v24, v24')
    for i in range(25,64): A(f'v_fmac_f32 v3, v{i}, v{i}')
    row_allreduce(A,3)
    A('v_mov_b32 v64, 0x3727c5ac\nv_mov_b32 v65, 0x3acccccd\nv_fma_f32 v3, v3, v65, v64\nv_rsq_f32 v3, v3')
    for i in range(24,64): A(f'v_mul_f32 v{i}, v{i}, v3')
    for i in range(20): A(f'v_cvt_pk_bf16_f32 v{4+i}, v{24+2*i}, v{25+2*i}')
    for p in range(5): A(f'buffer_store_dwordx4 v[{4+4*p}:{7+4*p}], v2, s[{SWS}:{SWS+3}], s30 offen offset:{256*p} sc1')
    A(f'{E}:')
    stamp(A,23,2,[(sWV,0)])
    l=A.lab('LW'); A(f's_waitcnt vmcnt(0)\ns_barrier\ns_cmp_lg_u32 s{sWV}, 0\ns_cbranch_scc1 {l}')
    arr2_issue(A,2); A('s_waitcnt vmcnt(0)'); arr2_last(A,2); go2_wait(A,2,2)
    A(f'{l}:\ns_barrier')
    stamp(A,24,2,[(sWV,0)])
ACC=64; F=[128,144]; VDA=160; VDB=164; VA0=168; VB0=172; VA=173; VB=177
sTA=50; sTB=51; sLDA=52; sLDB=53; sN=54; sTYPE=55; sRB=56; sNB=57; sSTEP=58; sKB=59; sCNT=60; sR=61; sW3=62; sWM=63; sT0=64; sT1=65; sPA=66; sPB=67; sOB=68
def gemm_dma(A):
    A(f's_and_b32 s{sT0}, s{sKB}, 3\ns_lshl_b32 s{sT0}, s{sT0}, 15\ns_lshl_b32 s{sT1}, s{sWV}, 12\ns_add_u32 s{sT0}, s{sT0}, s{sT1}\ns_mov_b32 m0, s{sT0}')
    for i in range(4): A(f'buffer_load_dwordx4 v{VDA+i}, s[{SWS}:{SWS+3}], s{sPA} offen offset:{1024*i} sc1 lds')
    A(f's_add_u32 m0, s{sT0}, 16384')
    for i in range(4): A(f'buffer_load_dwordx4 v{VDB+i}, s[{SB}:{SB+3}], s{sPB} offen offset:{1024*i} lds')
    A(f's_add_u32 s{sPA}, s{sPA}, 128\ns_lshl_b32 s{sT1}, s{sLDB}, 6\ns_add_u32 s{sPB}, s{sPB}, s{sT1}\ns_add_u32 s{sKB}, s{sKB}, 1')
def frag_reads(A,f,kk):
    b=F[f]
    for i in range(2): A(f'ds_read_b128 v[{b+4*i}:{b+4*i+3}], v{VA+kk} offset:{4096*i}')
    for j in range(2):
        for t in range(2): A(f'ds_read_b64_tr_b16 v[{b+8+4*j+2*t}:{b+8+4*j+2*t+1}], v{VB} offset:{8192*j+2048*kk+512*t}')
def frag_mfma(A,f,swap,zero=False):
    b=F[f]
    for i in range(2):
        for j in range(2):
            d=ACC+32*i+16*j; fa=f'v[{b+4*i}:{b+4*i+3}]'; fb=f'v[{b+8+4*j}:{b+8+4*j+3}]'
            x,y=(fb,fa) if swap else (fa,fb)
            A(f'v_mfma_f32_32x32x16_bf16 v[{d}:{d+15}], {x}, {y}, '+('0' if zero else f'v[{d}:{d+15}]'))
def gemm_step(A,swap,first,vm,dma):
    A(f's_waitcnt vmcnt({vm})\ns_barrier')
    A(f's_and_b32 s{sT0}, s{sSTEP}, 3\ns_lshl_b32 s{sT0}, s{sT0}, 15')
    for kk in range(4): A(f'v_add_u32 v{VA+kk}, s{sT0}, v{VA0+kk}')
    A(f'v_add_u32 v{VB}, s{sT0}, v{VB0}')
    frag_reads(A,0,0)
    if dma: gemm_dma(A)
    if not first: frag_mfma(A,1,swap)
    frag_reads(A,1,1); A('s_waitcnt lgkmcnt(6)'); frag_mfma(A,0,swap,zero=first)
    frag_reads(A,0,2); A('s_waitcnt lgkmcnt(6)'); frag_mfma(A,1,swap)
    frag_reads(A,1,3); A('s_waitcnt lgkmcnt(6)'); frag_mfma(A,0,swap)
    A(f's_waitcnt lgkmcnt(0)\ns_add_u32 s{sSTEP}, s{sSTEP}, 1')
def gemm_body(A,swap,name):
    gemm_step(A,swap,True,16,True)
    L=A.lab('GL')
    A(f'{L}:')
    gemm_step(A,swap,False,16,True)
    A(f's_cmp_lt_u32 s{sKB}, s{sN}\ns_cbranch_scc1 {L}')
    gemm_step(A,swap,False,16,False)
    gemm_step(A,swap,False,8,False)
    gemm_step(A,swap,False,0,False)
    frag_mfma(A,1,swap)
def silu(A,x,t):
    A(f'v_mul_f32 v{t}, 0xbfb8aa3b, v{x}\nv_exp_f32 v{t}, v{t}\nv_add_f32 v{t}, 1.0, v{t}\nv_rcp_f32 v{t}, v{t}\nv_mul_f32 v{x}, v{x}, v{t}')
def pack_swap(A,d,o):
    for q in range(4):
        A(f'v_cvt_pk_bf16_f32 v{o+2*q}, v{d+4*q}, v{d+4*q+1}\nv_cvt_pk_bf16_f32 v{o+2*q+1}, v{d+4*q+2}, v{d+4*q+3}')
    for qq in range(2):
        A(f'v_permlane32_swap_b32 v{o+4*qq}, v{o+4*qq+2}\nv_permlane32_swap_b32 v{o+4*qq+1}, v{o+4*qq+3}')
def worker_batch(A):
    A(f'''s_mul_i32 s{sW3}, s{sID}, 21846
    s_lshr_b32 s{sW3}, s{sW3}, 16
    s_mul_i32 s28, s{sW3}, 3
    s_sub_u32 s{sWM}, s{sID}, s28
    s_mov_b32 s{sR}, 0''')
    A(f'''s_lshr_b32 s28, s{sWV}, 1
    s_and_b32 s29, s{sWV}, 1
    v_and_b32 v2, 31, v0
    v_lshrrev_b32 v3, 5, v0
    v_bfe_u32 v4, v0, 1, 3
    s_lshl_b32 s30, s28, 13
    v_lshl_add_u32 v5, v2, 7, s30''')
    for kk in range(4):
        A(f'v_add_u32 v6, {2*kk}, v3\nv_xor_b32 v6, v6, v4\nv_lshl_add_u32 v{VA0+kk}, v6, 4, v5')
    A(f'''v_lshrrev_b32 v2, 5, v0
    v_bfe_u32 v3, v0, 2, 2
    v_lshl_add_u32 v2, v2, 3, v3
    v_lshlrev_b32 v2, 7, v2
    v_bfe_u32 v3, v0, 3, 1
    v_xor_b32 v3, s29, v3
    v_lshl_add_u32 v2, v3, 6, v2
    v_bfe_u32 v3, v0, 4, 1
    v_lshl_add_u32 v2, v3, 5, v2
    v_and_b32 v3, 3, v0
    v_lshl_add_u32 v2, v3, 3, v2
    v_add_u32 v{VB0}, 16384, v2''')
    A('WTASK:')
    A(f'''s_mul_i32 s28, s{sR}, 192
    s_add_u32 s28, s28, s{sID}
    s_cmp_ge_u32 s28, 2048
    s_cbranch_scc1 WBATCH_END
    s_cmp_ge_u32 s28, 960
    s_cbranch_scc1 WD1
    s_mul_i32 s{sRB}, s{sR}, 3
    s_add_u32 s{sRB}, s{sRB}, s{sWM}
    s_mov_b32 s{sNB}, s{sW3}
    s_branch WD_KV
    WD1:
    s_sub_u32 s28, s28, 960
    s_cmp_ge_u32 s28, 64
    s_cbranch_scc1 WD2
    s_mov_b32 s{sRB}, 15
    s_mov_b32 s{sNB}, s28
    WD_KV:
    s_mov_b32 s{sTYPE}, 0
    s_cmp_lt_u32 s{sNB}, 32
    s_cbranch_scc1 WD_K
    s_sub_u32 s{sNB}, s{sNB}, 32
    s_mov_b32 s{sTYPE}, 1''')
    srd(A,SB,32,5242880)
    A(f's_mov_b32 s{sOB}, {VF}\ns_branch WD_QKV\nWD_K:')
    srd(A,SB,24,5242880)
    A(f'''s_mov_b32 s{sOB}, {KF}
    s_branch WD_QKV
    WD2:
    s_sub_u32 s28, s28, 64
    s_cmp_ge_u32 s28, 432
    s_cbranch_scc1 WD3
    s_mul_i32 s29, s28, 607
    s_lshr_b32 s29, s29, 16
    s_mul_i32 s30, s29, 108
    s_sub_u32 s30, s28, s30
    s_and_b32 s31, s30, 3
    s_lshl_b32 s29, s29, 2
    s_add_u32 s{sRB}, s29, s31
    s_lshr_b32 s{sNB}, s30, 2
    s_mov_b32 s{sTYPE}, 3
    s_cmp_lt_u32 s{sWV}, 2
    s_cbranch_scc1 WD_G''')
    srd(A,SB,72,2211840); A('s_branch WD_G2\nWD_G:'); srd(A,SB,64,2211840)
    A(f'''WD_G2:
    s_mov_b32 s{sLDA}, 1280
    s_mov_b32 s{sLDB}, 3456
    s_mov_b32 s{sN}, 10
    s_lshl_b32 s{sTB}, s{sNB}, 7
    s_mul_i32 s{sTA}, s{sRB}, {128*1280}
    s_add_u32 s{sTA}, s{sTA}, {XN}
    s_branch WD_DONE
    WD3:
    s_sub_u32 s28, s28, 432
    s_cmp_ge_u32 s28, 512
    s_cbranch_scc1 WD4
    s_lshr_b32 s29, s28, 7
    s_lshl_b32 s29, s29, 2
    s_and_b32 s30, s28, 3
    s_add_u32 s{sRB}, s29, s30
    s_bfe_u32 s{sNB}, s28, 0x50002
    s_mov_b32 s{sTYPE}, 2''')
    srd(A,SB,16,5242880)
    A(f'''s_mov_b32 s{sOB}, {QF}
    WD_QKV:
    s_mov_b32 s{sLDA}, 1280
    s_mov_b32 s{sLDB}, 8192
    s_mov_b32 s{sN}, 10
    s_lshl_b32 s{sTB}, s{sNB}, 8
    s_lshr_b32 s29, s{sWV}, 1
    s_lshl_b32 s29, s29, 7
    s_add_u32 s{sTB}, s{sTB}, s29
    s_mul_i32 s{sTA}, s{sRB}, {128*1280}
    s_add_u32 s{sTA}, s{sTA}, {XN}
    s_branch WD_DONE
    WD4:
    s_sub_u32 s28, s28, 512
    s_mul_i32 s{sRB}, s28, 13108
    s_lshr_b32 s{sRB}, s{sRB}, 16
    s_mul_i32 s29, s{sRB}, 5
    s_sub_u32 s{sNB}, s28, s29
    s_mov_b32 s{sTYPE}, 4''')
    srd(A,SB,80,2211840)
    A(f'''s_mov_b32 s{sLDA}, 3456
    s_mov_b32 s{sLDB}, 1280
    s_mov_b32 s{sN}, 27
    s_lshl_b32 s{sTB}, s{sNB}, 8
    s_lshr_b32 s29, s{sWV}, 1
    s_lshl_b32 s29, s29, 7
    s_add_u32 s{sTB}, s{sTB}, s29
    s_mul_i32 s{sTA}, s{sRB}, {128*3456}
    s_add_u32 s{sTA}, s{sTA}, {HB}
    s_lshl_b32 s30, s{sRB}, 7
    s_add_u32 s30, s30, {C_H0}''')
    poll_all(A,'s30',27,3)
    A('WD_DONE:')
    A(f'''v_lshrrev_b32 v2, 3, v0
    s_lshl_b32 s28, s{sWV}, 5
    v_add_u32 v3, s28, v2
    v_and_b32 v4, 7, v0
    v_lshrrev_b32 v5, 4, v0''')
    for i in range(4):
        A(f'''v_add_u32 v6, {8*i}, v3
        v_mul_lo_u32 v6, v6, s{sLDA}
        v_add_u32 v7, {(4*i)&7}, v5
        v_xor_b32 v7, v7, v4
        v_lshl_add_u32 v6, v7, 4, v6
        v_subrev_u32 v{VDA+i}, {1024*i}, v6''')
    A(f'''s_and_b32 s28, s{sWV}, 1
    s_lshl_b32 s28, s28, 5
    v_add_u32 v3, s28, v2
    v_and_b32 v5, 1, v5
    v_lshlrev_b32 v5, 2, v5
    v_xor_b32 v7, v5, v4''')
    for i in range(4):
        A(f'''v_add_u32 v6, {8*i}, v3
        v_mul_lo_u32 v6, v6, s{sLDB}
        v_lshl_add_u32 v6, v7, 4, v6
        v_subrev_u32 v{VDB+i}, {1024*i}, v6''')
    A(f's_mov_b32 s{sPA}, s{sTA}\ns_mov_b32 s{sPB}, s{sTB}\ns_mov_b32 s{sKB}, 0\ns_mov_b32 s{sSTEP}, 0')
    for i in range(3): gemm_dma(A)
    A(f's_cmp_eq_u32 s{sTYPE}, 1\ns_cbranch_scc1 WG_NS')
    gemm_body(A,True,'S')
    A(f's_cmp_eq_u32 s{sTYPE}, 3\ns_cbranch_scc1 WE_F1\ns_cmp_eq_u32 s{sTYPE}, 4\ns_cbranch_scc1 WE_F2')
    def kv_addr():
        A(f'''v_bfe_u32 v2, v0, 4, 1
        v_lshlrev_b32 v2, 10, v2
        v_lshrrev_b32 v3, 5, v0
        v_lshl_add_u32 v2, v3, 8, v2
        v_and_b32 v3, 15, v0
        v_lshl_add_u32 v2, v3, 4, v2
        s_and_b32 s28, s{sWV}, 1
        s_lshl_b32 s28, s28, 11
        v_add_u32 v2, s28, v2
        s_lshl_b32 s28, s{sRB}, 2
        s_and_b32 s29, s{sWV}, 2
        s_add_u32 s28, s28, s29
        s_lshl_b32 s28, s28, 5
        s_add_u32 s28, s28, s{sNB}
        s_lshl_b32 s28, s28, 13
        s_add_u32 s28, s28, s{sOB}''')
    kv_addr()
    for i in range(2):
        for j in range(2):
            o=8+16*i+8*j
            pack_swap(A,ACC+32*i+16*j,o)
            A(f's_add_u32 s29, s28, {i*262144+j*4096}')
            for q in range(2): A(f'buffer_store_dwordx4 v[{o+4*q}:{o+4*q+3}], v2, s[{SWS}:{SWS+3}], s29 offen offset:{512*q} sc1')
    A(f's_cmp_eq_u32 s{sTYPE}, 0\ns_mov_b32 s30, {C_Q0}\ns_cselect_b32 s30, {C_KV0}, s30\ns_branch WE_SIG')
    A('WG_NS:')
    gemm_body(A,False,'N')
    kv_addr()
    for i in range(2):
        for j in range(2):
            o=8+16*i+8*j; d=ACC+32*i+16*j
            for pc,(qa,qb) in enumerate(((0,2),(1,3))):
                for k,q in enumerate((qa,qb)):
                    A(f'v_cvt_pk_bf16_f32 v{o+4*pc+2*k}, v{d+4*q}, v{d+4*q+1}\nv_cvt_pk_bf16_f32 v{o+4*pc+2*k+1}, v{d+4*q+2}, v{d+4*q+3}')
            A(f's_add_u32 s29, s28, {i*262144+j*4096}')
            for q in range(2): A(f'buffer_store_dwordx4 v[{o+4*q}:{o+4*q+3}], v2, s[{SWS}:{SWS+3}], s29 offen offset:{512*q} sc1')
    A(f's_mov_b32 s30, {C_KV0}\ns_branch WE_SIG')
    def rm_addr(ld):
        A(f'''v_and_b32 v2, 31, v0
        s_lshr_b32 s28, s{sWV}, 1
        s_lshl_b32 s28, s28, 6
        v_add_u32 v2, s28, v2
        v_mul_u32_u24 v2, {ld}, v2
        v_lshrrev_b32 v3, 5, v0
        v_lshl_add_u32 v2, v3, 4, v2
        s_and_b32 s28, s{sWV}, 1
        s_lshl_b32 s28, s28, 6
        v_add_u32 v2, s28, v2''')
    A('WE_F1:')
    rm_addr(3456)
    A(f's_mul_i32 s28, s{sRB}, {128*3456}\ns_lshl_b32 s29, s{sNB}, 7\ns_add_u32 s28, s28, s29\ns_add_u32 s28, s28, {HB}')
    for i in range(2):
        d=ACC+32*i
        for r in range(16):
            silu(A,d+r,4+(r&3)); A(f'v_mul_f32 v{d+r}, v{d+r}, v{d+16+r}')
        o=8+8*i
        pack_swap(A,d,o)
        A(f's_add_u32 s29, s28, {i*32*3456}')
        for q in range(2): A(f'buffer_store_dwordx4 v[{o+4*q}:{o+4*q+3}], v2, s[{SWS}:{SWS+3}], s29 offen offset:{32*q} sc1')
    A(f's_mov_b32 s30, {C_H0}\ns_branch WE_SIG')
    A('WE_F2:')
    rm_addr(1280)
    A(f's_mul_i32 s28, s{sRB}, {128*1280}\ns_lshl_b32 s29, s{sNB}, 8\ns_add_u32 s28, s28, s29\ns_add_u32 s28, s28, {GB}')
    for i in range(2):
        for j in range(2):
            d=ACC+32*i+16*j; o=8+16*i+8*j
            for r in range(16): silu(A,d+r,4+(r&3))
            pack_swap(A,d,o)
            A(f's_add_u32 s29, s28, {i*32*1280+j*128}')
            for q in range(2): A(f'buffer_store_dwordx4 v[{o+4*q}:{o+4*q+3}], v2, s[{SWS}:{SWS+3}], s29 offen offset:{32*q} sc1')
    A(f's_mov_b32 s30, {C_G0}')
    A(f'WE_SIG:\ns_cmp_lt_u32 s{sTYPE}, 2\ns_cselect_b32 s29, 8, 7\ns_lshl_b32 s29, s{sRB}, s29\ns_add_u32 s30, s30, s29\ns_cmp_eq_u32 s{sTYPE}, 1\ns_cselect_b32 s29, 32, 0\ns_add_u32 s29, s29, s{sNB}\ns_lshl_b32 s29, s29, 2\ns_add_u32 s30, s30, s29')
    signal(A,'s30')
    A(f's_add_u32 s{sR}, s{sR}, 1\ns_branch WTASK\nWBATCH_END:')
    stamp(A,25,2,[(sWV,0)])
```

```python
from asmlib import *
from gen1 import *
WL=0; VXL=122880; MI=131072; EX=141312; RED=EX+4096; OI=149504; KX=151552; SPARE=159744
sS=50; sBUF=51; sBUFN=52; sBUFR=53; sTAG=54; sPW0=55; sPW1=56; sPW2=57; sPR=58; sSL=59; sKVO=60; sLOC=61; sREM=62; sFM=63; sT=64; sT2=65; sT3=66; sCNT=67; sSC=68; sLG=70; sRG=71; sFMP=46; sWU=47; sIML=48; sIMR=49; sPUB=44; sKMO=45
EXM=70
SMF='v_smfmac_f32_16x16x64_bf16'
Areg=lambda i:8+4*i
DQ=[28,32]; DK=[36,40]; DV=[44,48]; L=[52,60]
class Q:
    def __init__(s,A,name): s.A=A; s.q=[]; s.name=name
    def add(s,tag,n=1): s.q+= [tag]*n
    def wait(s,tag):
        if tag not in s.q: return
        i=max(k for k,t in enumerate(s.q) if t==tag); n=len(s.q)-1-i
        s.A(f's_waitcnt {s.name}({n})'); s.q=s.q[i+1:]
    def all(s): s.A(f's_waitcnt {s.name}(0)'); s.q=[]
def slotreg(p): return a(8*p,8) if p<32 else v(72+8*(p-32),8)
def slotpair(p,t): return a(8*p+2*t,2) if p<32 else v(72+8*(p-32)+2*t,2)
def P_loc(i,m): return 5*i+m
def P_rem(i,m): return 25+4*i+m
def P_wo(ks,t): return 45+5*ks+t
def ldsslot_addr(k,half):
    return (6,k*8192+1024*half) if k<8 else (7,(k-8)*8192+1024*half)
def read_slot(A,dq,k,dst,tag):
    for hf in range(2):
        r,o=ldsslot_addr(k,hf); A(f'ds_read_b128 v[{dst+4*hf}:{dst+4*hf+3}], v{r} offset:{o}')
    dq.add(tag,2)
TSON=False
TSM=0; TSB=36
RTON=False
def TS(A,k):
    if RTON:
        for kk,st in ([(7,40),(11,41)] if k==7 else [(k,41)]):
            l=A.lab('TS'); A(f's_cmp_lg_u32 s{sS}, {st}\ns_cbranch_scc1 {l}\ns_memrealtime s[{72+2*kk}:{73+2*kk}]\n{l}:')
        return
    if not TSON or k==10 and False: return
    if TSM==3:
        if k!=0: return
        for j in range(11):
            l=A.lab('TS'); A(f's_cmp_lg_u32 s{sS}, {TSB+j}\ns_cbranch_scc1 {l}\ns_memtime s[{72+2*j}:{73+2*j}]\n{l}:')
        return
    st=21 if TSM==0 else (10+4*(k//2) if TSM==1 else 10+4*((k+1)//2))
    if k==10: st+=1
    l=A.lab('TS'); A(f's_cmp_lg_u32 s{sS}, {st}\ns_cbranch_scc1 {l}\ns_memtime s[{72+2*k}:{73+2*k}]\n{l}:')
def modal(A,fast,slow):
    l1=A.lab('MS'); l2=A.lab('MD')
    A(f's_cmp_eq_u32 s{sMODE}, 0\ns_cbranch_scc1 {l1}'); A(fast); A(f's_branch {l2}\n{l1}:'); A(slow); A(f'{l2}:')
def weights_prologue(A):
    units=[]
    for i in range(5): units+=[('q',0,0,i),('q',1,0,i),('k',0,0,i),('k',1,0,i),('v',0,0,i)]
    for i in range(5): units+=[('q',0,1,i),('q',1,1,i),('k',0,1,i),('k',1,1,i)]
    for ks in range(2):
        for t in range(5): units.append(('o',t,ks,0))
    rem=[('v',k&1,1,k>>1) for k in range(10)]
    units+=rem[5:10]
    units+=[('v',1,0,i) for i in range(5)]
    units+=rem[0:5]
    assert len(units)==70
    SR={'q':8,'k':12,'v':16,'o':20}
    srd(A,8,16,5242880); srd(A,12,24,5242880); srd(A,16,32,5242880); srd(A,20,40,5242880); srd(A,72,96,256)
    A(f'''v_lshrrev_b32 v2, 3, v0
    s_lshl_b32 s28, s{sWV}, 4
    v_add_u32 v2, s28, v2
    v_bfe_u32 v3, v0, 1, 2
    v_lshrrev_b32 v4, 5, v0
    v_and_b32 v5, 1, v0''')
    for ii in range(2):
        A(f'''v_add_u32 v6, {2*ii}, v4
        v_and_b32 v6, 3, v6
        v_xor_b32 v6, v6, v3
        v_lshl_or_b32 v6, v6, 1, v5
        v_lshlrev_b32 v6, 4, v6
        v_add_u32 v7, {8*ii}, v2
        v_lshl_add_u32 v{58+ii}, v7, 13, v6
        v_mul_u32_u24 v7, 1280, v7
        v_add_u32 v{60+ii}, v7, v6
        v_subrev_u32 v{58+ii}, {1024*ii}, v{58+ii}
        v_subrev_u32 v{60+ii}, {1024*ii}, v{60+ii}''')
    A(f'''v_lshrrev_b32 v2, 5, v0
    v_lshlrev_b32 v2, 4, v2
    v_bfe_u32 v3, v0, 4, 1
    v_lshl_add_u32 v2, v3, 2, v2
    v_bfe_u32 v4, v0, 2, 1
    v_add_u32 v2, v2, v4
    v_bfe_u32 v4, v0, 3, 1
    v_lshl_add_u32 v2, v4, 3, v2
    v_lshlrev_b32 v2, 7, v2
    v_lshl_add_u32 v3, v4, 1, v3
    v_xor_b32 v3, s{sWV}, v3
    v_lshl_add_u32 v2, v3, 5, v2
    v_and_b32 v3, 3, v0
    v_lshl_add_u32 v62, v3, 3, v2
    v_add_u32 v63, 0x10000, v62
    s_lshl_b32 s28, s{sWV}, 11
    v_lshl_add_u32 v64, v0, 4, s28
    v_add_u32 v65, 0x10000, v64''')
    A(f'''s_lshl_b32 s40, s{sID}, 8
    s_mul_i32 s41, s{sX}, {5*64*8192}
    s_sub_u32 s42, {5*64*8192}, s41
    s_add_u32 s41, s41, s40
    s_add_u32 s42, s42, s40
    s_mul_i32 s43, s{sID}, {128*1280}
    s_mul_i32 s44, s{sX}, 640
    s_add_u32 s43, s43, s44
    s_lshl_b32 s45, s{sWV}, 11''')
    def issue(j):
        for i in range(5):
            m,u,rel,ii=units[5*j+i]; pos=(j%3)*5+i
            if m=='o': A(f's_add_u32 s28, s43, {rel*64*1280+u*128}'); vv=60
            else: A(f's_add_u32 s28, s{41+rel}, {ii*64*8192+u*128}'); vv=58
            A(f's_add_u32 m0, s45, {pos*8192}')
            for k in range(2): A(f'buffer_load_dwordx4 v{vv+k}, s[{SR[m]}:{SR[m]+3}], s28 offen offset:{1024*k} lds')
    for j in range(3): issue(j)
    for j in range(14):
        A(f's_waitcnt vmcnt({10*min(2,13-j)})\ns_barrier')
        if j in (0,2):
            l=A.lab('A2'); A(f's_cmp_lg_u32 s{sWV}, 0\ns_cbranch_scc1 {l}')
            if j==0: arr2_issue(A,66,72,False)
            else: arr2_last(A,66,72)
            A(f'{l}:')
        for i in range(5):
            pos=(j%3)*5+i; r,o=(62,pos*8192) if pos<8 else (63,pos*8192-65536)
            for t in range(4):
                off=o+4096*(t>>1)+256*(t&1)
                dst=slotpair(5*j+i,t) if j<11 else v(8+8*i+2*t,2)
                A(f'ds_read_b64_tr_b16 {dst}, v{r} offset:{off}')
            if i%2==1: A('s_waitcnt lgkmcnt(4)')
        A('s_waitcnt lgkmcnt(0)\ns_barrier')
        if j>=11:
            for i in range(5):
                pos=(j%3)*5+i; r,o=(64,pos*8192) if pos<8 else (65,pos*8192-65536)
                for hf in range(2): A(f'ds_write_b128 v{r}, v[{8+8*i+4*hf}:{8+8*i+4*hf+3}] offset:{o+1024*hf}')
            A('s_waitcnt lgkmcnt(0)')
        if j+3<14: issue(j+3)

def chk(A,regs,n,t=68):
    A(f'v_max3_u32 v{t}, v{regs}, v{regs+1}, v{regs+2}')
    A(f'v_max3_u32 v{t}, v{t}, v{regs+3}, v{regs+4}\nv_max3_u32 v{t+1}, v{regs+5}, v{regs+6}, v{regs+7}\nv_max_u32 v{t}, v{t}, v{t+1}')
    A(f'v_cmp_eq_u32 vcc, -1, v{t}')
def gl(A,regs,soff):
    for i in range(2): A(f'buffer_load_dwordx4 v[{regs+4*i}:{regs+4*i+3}], v0, s[{SWS}:{SWS+3}], s{soff} offen offset:{1024*i} sc1')
CNT=False
def cnt(A,r):
    if CNT: A(f's_add_u32 s{r}, s{r}, 1')
def gather_wait(A,regs,soff,code):
    Lp=A.lab('GP'); D=A.lab('GD')
    A(f'{Lp}:\ns_waitcnt vmcnt(0)')
    chk(A,regs,2)
    A(f's_cbranch_vccz {D}')
    gl(A,regs,soff)
    cnt(A,38 if code==11 else 39)
    A(f's_add_u32 s{sCNT}, s{sCNT}, 1\ns_cmp_lt_u32 s{sCNT}, {SPIN}\ns_cbranch_scc1 {Lp}')
    abort(A,code)
    A(f'{D}:')
def kv_dma(A,part):
    if part==0:
        A(f"""s_lshl_b32 s{sT2}, s{sWV}, 11
        s_add_u32 s{sT}, s{sKVO}, s{sT2}
        s_add_u32 s{sT}, s{sT}, {KF}
        s_add_u32 m0, s{sT2}, {KX}
        s_lshl_b32 s{sT3}, s{sWV}, 10
        buffer_load_dwordx4 v0, s[{SWS}:{SWS+3}], s{sT} offen sc1 lds
        buffer_load_dwordx4 v0, s[{SWS}:{SWS+3}], s{sT} offen offset:1024 sc1 lds""")
    else:
        A(f"""s_add_u32 s{sT}, s{sKVO}, s{sT3}
        s_add_u32 s{sT}, s{sT}, {VF}
        s_add_u32 m0, s{sT2}, {VXL}
        s_add_u32 s{sT3}, s{sT}, 3072
        buffer_load_dwordx4 v0, s[{SWS}:{SWS+3}], s{sT} offen sc1 lds
        buffer_load_dwordx4 v0, s[{SWS}:{SWS+3}], s{sT3} offen offset:1024 sc1 lds""")
def rec(A,opts):
    global TSON,TSM,CNT,RTON
    RTON='rt' in opts
    CNT='cnt' in opts
    TSON=any(o in opts for o in('ts','tse','tso','tss')); TSM=1 if 'tse' in opts else 2 if 'tso' in opts else 3 if 'tss' in opts else 0
    me=[(sID,0),(sX,0),(sWV,0)]
    stamp(A,17,2,me)
    weights_prologue(A)
    stamp(A,18,2,me)
    A(f"""v_and_b32 v8, 15, v0
    v_lshrrev_b32 v9, 4, v0
    s_lshl_b32 s28, s{sWV}, 4
    v_add_u32 v2, s28, v8
    v_lshlrev_b32 v2, 5, v2
    v_lshl_add_u32 v2, v9, 3, v2
    v_add_u32 v2, {EX}, v2
    v_bfe_u32 v10, v0, 2, 2
    v_lshl_add_u32 v3, v9, 3, v10
    v_lshlrev_b32 v3, 5, v3
    v_and_b32 v10, 3, v0
    v_lshl_add_u32 v3, v10, 3, v3
    v_add_u32 v3, {EX}, v3
    v_lshrrev_b32 v10, 2, v8
    v_lshrrev_b32 v12, 5, v0
    v_lshl_add_u32 v10, v10, 1, v12
    v_lshlrev_b32 v10, 1, v10
    v_add_u32 v10, s28, v10
    v_and_b32 v11, 1, v0
    v_add_u32 v10, v10, v11
    v_lshlrev_b32 v10, 4, v10
    v_and_b32 v12, 1, v9
    v_lshl_add_u32 v4, v12, 3, v10
    v_add_u32 v4, {OI}, v4
    v_mov_b32 v1, 0x4444
    v_mov_b32 v12, 0xeeee
    v_bfe_u32 v11, v0, 1, 1
    v_cmp_eq_u32 vcc, 1, v11
    v_cndmask_b32 v1, v1, v12, vcc
    v_lshlrev_b32 v0, 4, v0
    v_add_u32 v5, {MI}, v0
    s_lshl_b32 s28, s{sWV}, 11
    v_add_u32 v6, s28, v0
    v_add_u32 v7, 0x10000, v6""")
    A(f"""s_mov_b32 s{sS}, 0
    s_mov_b32 s{sBUF}, {MEMB}
    s_mov_b32 s{sBUFN}, {MEMB+20480}
    s_mov_b32 s{sBUFR}, {MEMB+40960}
    s_mov_b32 s{sTAG}, 0
    s_lshl_b32 s28, s{sX}, 5
    s_add_u32 s28, s28, s{sID}
    s_mul_i32 s{sPW0}, s28, 10240
    s_lshl_b32 s29, s{sWV}, 9
    s_add_u32 s{sPW0}, s{sPW0}, s29
    s_add_u32 s{sPW0}, s{sPW0}, {PBUF}
    s_add_u32 s{sPW1}, s{sPW0}, 4096
    s_add_u32 s{sPW2}, s{sPW0}, 8192
    s_lshl_b32 s28, s{sX}, 5
    s_mul_i32 s{sPR}, s28, 10240
    s_lshl_b32 s29, s{sID}, 9
    s_add_u32 s{sPR}, s{sPR}, s29
    s_lshl_b32 s29, s{sWV}, 7
    s_add_u32 s{sPR}, s{sPR}, s29
    s_add_u32 s{sPR}, s{sPR}, {PBUF}
    s_add_u32 s32, s{sPR}, 81920
    s_add_u32 s33, s{sPR}, 163840
    s_add_u32 s34, s{sPR}, 245760
    s_mul_i32 s{sSL}, s{sX}, 5120
    s_lshl_b32 s29, s{sID}, 8
    s_add_u32 s{sSL}, s{sSL}, s29
    s_lshl_b32 s{sKVO}, s{sID}, 13
    s_lshl_b32 s{sFM}, s{sID}, 5
    s_lshl_b32 s28, s{sX}, 4
    s_add_u32 s{sFM}, s{sFM}, s28
    s_lshl_b32 s28, s{sWV}, 2
    s_add_u32 s{sFM}, s{sFM}, s28
    s_add_u32 s{sFM}, s{sFM}, {F_M}
    s_mov_b32 s{sFMP}, 0x19000
    s_mov_b32 s{sSC}, 0x3e0293ee
    s_mov_b32 s{sCNT}, 0
    s_cmp_gt_u32 s{sWV}, 1
    s_cselect_b32 s{sWU}, {VF-KF}, 0
    s_add_u32 s{sWU}, s{sWU}, {KF}
    s_and_b32 s28, s{sWV}, 1
    s_lshl_b32 s28, s28, 12
    s_add_u32 s{sWU}, s{sWU}, s28
    s_add_u32 s{sWU}, s{sWU}, {32*8192}""")
    A(f"""s_sub_u32 s28, s{sWV}, 1
    s_lshl_b32 s28, s28, 11
    s_cmp_eq_u32 s{sWV}, 3
    s_cselect_b32 s{sIML}, 3072, s28
    s_mul_i32 s{sLOC}, s{sX}, 5120
    s_sub_u32 s{sREM}, {5120+10240}, s{sLOC}
    s_add_u32 s{sLOC}, s{sLOC}, s{sIML}
    s_mov_b32 s{sIMR}, s{sIML}
    s_add_u32 s{sREM}, s{sREM}, s{sIMR}
    s_add_u32 s{sIMR}, s{sIMR}, 5120
    s_add_u32 s{sIML}, s{sIML}, {MI}
    s_add_u32 s{sIMR}, s{sIMR}, {MI}
    s_add_u32 s{sLG}, s{sBUF}, s{sLOC}
    s_add_u32 s{sRG}, s{sBUF}, s{sREM}""")
    A(f'v_lshrrev_b32 v8, 2, v0\nv_add_u32 v8, {RED}, v8\nv_mov_b32 v9, -1\nds_write_b32 v8, v9')
    for r in range(28,52,2): A(f'v_mov_b64 v[{r}:{r+1}], 0')
    go2_wait(A,8,9,72)
    if 'norecwait' not in opts: poll_all(A,C_KV0,64,10,vt=8)
    if RTON:
        for k in range(72,96): A(f's_mov_b32 s{k}, 0')
    if CNT: A('s_mov_b32 s38, 0\ns_mov_b32 s39, 0\ns_mov_b32 s40, 0\ns_mov_b32 s41, 0')
    stamp(A,19,8,me)
    A(f's_cmp_eq_u32 s{sMODE}, 0\ns_cbranch_scc1 STEP_S')
    step(A,opts,'F',me); step(A,opts,'S',me)
    A(f"""RECEND:
    s_waitcnt vmcnt(0)
    s_add_u32 s{sT}, s{sFM}, {63*1024}
    buffer_store_dword v1, off, s[{SWS}:{SWS+3}], s{sT} sc1""")
    l=A.lab('CG')
    srd(A,72,96,256)
    A(f's_or_b32 s28, s{sID}, s{sX}\ns_or_b32 s28, s28, s{sWV}\ns_cmp_lg_u32 s28, 0\ns_cbranch_scc1 {l}\nv_mov_b32 v8, 0\nv_mov_b32 v9, 0\nv_mov_b32 v10, 0\nv_mov_b32 v11, 0\nv_mov_b32 v12, 128\ns_mov_b64 exec, 1\nbuffer_store_dwordx4 v[8:11], v12, s[72:75], 0 offen sc1\ns_mov_b64 exec, -1\n{l}:')
    stamp(A,29,8,me)
    if RTON:
        A(f'''s_lshl_b32 s28, s{sX}, 5
        s_add_u32 s28, s28, s{sID}
        s_lshl_b32 s28, s28, 8
        s_lshl_b32 s29, s{sWV}, 6
        s_add_u32 s28, s28, s29
        s_add_u32 s28, s28, 0x30000
        s_waitcnt lgkmcnt(0)
        v_mov_b32 v12, 0''')
        for k in range(12): A(f'v_mov_b32 v8, s{72+2*k}\nbuffer_store_dword v8, v12, s[{SWS}:{SWS+3}], s28 offen offset:{4*k} sc1')
    if CNT:
        A(f'''s_lshl_b32 s28, s{sX}, 5
        s_add_u32 s28, s28, s{sID}
        s_lshl_b32 s28, s28, 6
        s_lshl_b32 s29, s{sWV}, 4
        s_add_u32 s28, s28, s29
        s_add_u32 s28, s28, 0x30000
        v_mov_b32 v8, s38
        v_mov_b32 v9, s39
        v_mov_b32 v10, s40
        v_mov_b32 v11, s41
        v_mov_b32 v12, 0
        buffer_store_dwordx4 v[8:11], v12, s[{SWS}:{SWS+3}], s28 offen sc1''')
    if TSON:
        l=A.lab('T')
        A(f's_or_b32 s28, s{sID}, s{sX}\ns_or_b32 s28, s28, s{sWV}\ns_cmp_lg_u32 s28, 0\ns_cbranch_scc1 {l}\ns_waitcnt lgkmcnt(0)')
        srd(A,SC,96,256)
        for k in range(12): A(f's_mov_b32 s28, s{72+2*k}\nv_mov_b32 v8, s28\nv_mov_b32 v9, {128+4*k}\nbuffer_store_dword v8, v9, s[{SC}:{SC+3}], 0 offen')
        A(f'v_mov_b32 v8, s{sCNT}\nv_mov_b32 v9, {128+48}\nbuffer_store_dword v8, v9, s[{SC}:{SC+3}], 0 offen')
        A(f'{l}:')
    A('s_waitcnt vmcnt(0)\ns_endpgm')
def step(A,opts,M,me):
    fast=M=='F'; pl='' if fast else ' sc1'
    RI=int([o[2:] for o in opts if o.startswith('ri')][0]) if any(o.startswith('ri') for o in opts) else 0
    KD=int([o[2:] for o in opts if o.startswith('kd')][0]) if any(o.startswith('kd') for o in opts) else 0
    dq=Q(A,'lgkmcnt')
    WS=f's[{SWS}:{SWS+3}]'
    def smf(D,a_,B): A(f'{SMF} v[{D}:{D+3}], v[{a_}:{a_+3}], {B}, v1')
    def fold(D,dst): A(f'v_pk_add_f32 v[{D}:{D+1}], v[{D}:{D+1}], v[{D+2}:{D+3}]\nv_cvt_pk_bf16_f32 v{dst}, v{D}, v{D+1}')
    DQ0,DK0,DQ1,DK1=28,32,36,40
    A(f'STEP_{M}:')
    if fast:
        for k,sv in enumerate((16,32,48)): stamp(A,20+k,8,me+[(sS,sv)])
    TS(A,0)
    z0=A.lab('Z'); ld=A.lab('LD')
    def vdma():
        A(f"""s_lshl_b32 s{sT2}, s{sWV}, 11
        s_lshl_b32 s{sT3}, s{sWV}, 10
        s_add_u32 s{sT}, s{sKVO}, s{sT3}
        s_add_u32 s{sT}, s{sT}, {VF}
        s_add_u32 m0, s{sT2}, {VXL}
        s_add_u32 s{sT3}, s{sT}, 3072
        buffer_load_dwordx4 v0, {WS}, s{sT} offen sc1 lds
        buffer_load_dwordx4 v0, {WS}, s{sT3} offen offset:1024 sc1 lds""")
    A(f's_cmp_eq_u32 s{sWV}, 0\ns_cbranch_scc1 {z0}')
    if 'gs' in opts:
        gl(A,52,sLG)
        vdma()
        k3=A.lab('K3')
        A(f"""s_cmp_eq_u32 s{sWV}, 3
        s_cbranch_scc1 {k3}
        s_lshl_b32 s{sT2}, s{sWV}, 10
        s_add_u32 s{sT}, s{sKVO}, s{sT2}
        s_add_u32 s{sT}, s{sT}, {KF+5120}
        s_add_u32 m0, s{sT2}, {KX+5120}
        s_nop 0
        buffer_load_dwordx4 v0, {WS}, s{sT} offen sc1 lds
        {k3}:""")
        gl(A,60,sLG)
        Lp=A.lab('GP'); D1=A.lab('GD'); D2=A.lab('GD')
        A('s_waitcnt vmcnt(4)'); chk(A,52,2); A(f's_cbranch_vccz {D1}')
        A(f'{Lp}:'); gl(A,52,sLG)
        A('s_waitcnt vmcnt(2)'); chk(A,60,2); A(f's_cbranch_vccz {D2}')
        gl(A,60,sLG); cnt(A,38)
        A('s_waitcnt vmcnt(2)'); chk(A,52,2); A(f's_cbranch_vccz {D1}')
        A(f's_add_u32 s{sCNT}, s{sCNT}, 1\ns_cmp_lt_u32 s{sCNT}, {SPIN}\ns_cbranch_scc1 {Lp}')
        abort(A,11)
        A(f'{D2}:')
        if RTON: TS(A,10)
        A(f'v_add_u32 v68, s{sIML}, v0\nds_write_b128 v68, v[60:63]\nds_write_b128 v68, v[64:67] offset:1024')
        if RI==-2: A('s_waitcnt lgkmcnt(0)'); gl(A,60,sRG)
        A(f's_branch {ld}')
        A(f'{D1}:')
        if RTON: TS(A,10)
        if RI==-2: gl(A,60,sRG)
        A(f'v_add_u32 v68, s{sIML}, v0\nds_write_b128 v68, v[52:55]\nds_write_b128 v68, v[56:59] offset:1024')
        A(f's_branch {ld}\n{z0}:')
        A(f"""s_add_u32 s{sT}, s{sKVO}, {KF}
        s_mov_b32 m0, {KX}
        s_add_u32 s{sT2}, s{sT}, 4096""")
        for c in range(4): A(f'buffer_load_dwordx4 v0, {WS}, s{sT} offen offset:{1024*c} sc1 lds')
        A(f's_mov_b32 m0, {KX+4096}\ns_nop 0')
        for c in range(2): A(f'buffer_load_dwordx4 v0, {WS}, s{sT2} offen offset:{1024*c} sc1 lds')
        vdma()
        A(f's_waitcnt vmcnt(9)\n{ld}:')
    else:
        gl(A,8,sLG)
        gather_wait(A,8,sLG,11)
        if RTON: TS(A,10)
        if RI==-2: gl(A,60,sRG)
        A(f'v_add_u32 v68, s{sIML}, v0\nds_write_b128 v68, v[8:11]\nds_write_b128 v68, v[12:15] offset:1024')
        A(f's_branch {ld}\n{z0}:\ns_waitcnt vmcnt(1)\n{ld}:')
    dq.all(); A('s_barrier')
    TS(A,1)
    GS='gs' in opts; R2='r2' in opts
    R2I=int([o[3:] for o in opts if o.startswith('r2i')][0]) if any(o.startswith('r2i') for o in opts) else 2
    assert not R2 or GS
    for i in range(5):
        A(f'ds_read_b128 v[{Areg(i)}:{Areg(i)+3}], v5 offset:{1024*i}'); dq.add(f'A{i}')
        if i==0 and not GS: read_slot(A,dq,0,L[0],'L')
    if RI==-1:
        l=A.lab('W'); A(f's_cmp_eq_u32 s{sWV}, 0\ns_cbranch_scc1 {l}'); gl(A,60,sRG); A(f'{l}:')
    for i in range(5):
        dq.wait(f'A{i}')
        for m,D in enumerate((DQ0,DQ1,DK0,DK1,DV[0])): smf(D,Areg(i),slotreg(P_loc(i,m)))
        if GS:
            if i==0:
                l=A.lab('W'); A(f's_cbranch_scc1 {l}\ns_waitcnt vmcnt(2)\n{l}:')
            else:
                dq.wait('L'); smf(DV[1],Areg(i-1),v(L[0],8))
            read_slot(A,dq,i,L[0],'L')
            if R2 and i==R2I:
                l=A.lab('W'); A(f's_cmp_eq_u32 s{sWV}, 0\ns_cbranch_scc1 {l}'); gl(A,8,sRG); A(f'{l}:')
        else:
            dq.wait('L')
            smf(DV[1],Areg(i),v(L[0],8))
            if i<4: read_slot(A,dq,i+1,L[0],'L')
            if i==RI: gl(A,60,sRG)
            if i==max(RI,0)+KD and 'nokv' not in opts: kv_dma(A,0)
            if i==max(RI,0)+KD+1 and 'nokv' not in opts: kv_dma(A,1)
    TS(A,2)
    w0=A.lab('W'); w1=A.lab('W')
    A(f's_cmp_eq_u32 s{sWV}, 0\ns_cbranch_scc1 {w0}')
    if R2:
        Lp=A.lab('GP'); D1=A.lab('GD'); D2=A.lab('GD')
        A(f'{Lp}:\ns_waitcnt vmcnt(2)'); chk(A,60,2); A(f's_cbranch_vccz {D1}')
        gl(A,60,sRG); cnt(A,39)
        A('s_waitcnt vmcnt(2)'); chk(A,8,2); A(f's_cbranch_vccz {D2}')
        gl(A,8,sRG)
        A(f's_add_u32 s{sCNT}, s{sCNT}, 1\ns_cmp_lt_u32 s{sCNT}, {SPIN}\ns_cbranch_scc1 {Lp}')
        abort(A,13)
        A(f'{D2}:\nv_add_u32 v68, s{sIMR}, v0\nds_write_b128 v68, v[8:11]\nds_write_b128 v68, v[12:15] offset:1024\ns_branch {w1}')
        A(f'{D1}:\nv_add_u32 v68, s{sIMR}, v0\nds_write_b128 v68, v[60:63]\nds_write_b128 v68, v[64:67] offset:1024')
    else:
        gather_wait(A,60,sRG,13)
        A(f'v_add_u32 v68, s{sIMR}, v0\nds_write_b128 v68, v[60:63]\nds_write_b128 v68, v[64:67] offset:1024')
    A(f's_branch {w1}\n{w0}:\ns_waitcnt vmcnt(0)\n{w1}:')
    dq.all()
    if GS: smf(DV[1],Areg(4),v(L[0],8))
    A('s_barrier')
    TS(A,3)
    EA=(lambda i: 52+4*i if i<2 else Areg(i)) if R2 else Areg
    for i in range(5): A(f'ds_read_b128 v[{EA(i)}:{EA(i)+3}], v5 offset:{5120+1024*i}'); dq.add(f'A{i}')
    def rdK(j):
        for kt in range(2): A(f'ds_read_b128 v[{52+8*j+4*kt}:{55+8*j+4*kt}], v5 offset:{KX-MI+2048*j+1024*kt}'); dq.add(f'K{j}')
    b2=A.lab('B'); b4=A.lab('B')
    def flagst(): A(f'buffer_store_dword v1, off, {WS}, s{sFMP} sc1')
    def warm1(): A(f'v_lshlrev_b32 v70, 2, v0\ns_add_u32 s{sT}, s{sKVO}, s{sWU}\ns_mov_b32 m0, {SPARE}')
    def warm2(): A(f'buffer_load_dword v70, {WS}, s{sT} offen sc1 lds')
    def kvflag():
        A(f"""s_and_b32 s{sT}, s{sS}, 3
    s_cmp_lg_u32 s{sT}, 1
    s_cbranch_scc1 {b2}
    s_lshr_b32 s{sT}, s{sS}, 2
    s_lshl_b32 s{sT}, s{sT}, 8
    s_add_u32 s{sT}, s{sT}, {C_KV0+256}
    s_lshl_b32 s{sT2}, s{sWV}, 8
    s_add_u32 m0, s{sT2}, {SPARE+1024}
    v_lshrrev_b32 v71, 2, v0
    buffer_load_dword v71, {WS}, s{sT} offen sc1 lds
    {b2}:""")
    def resets():
        A(f"""s_cmp_lg_u32 s{sWV}, 0
    s_cbranch_scc1 {b4}
    s_cmp_ge_u32 s{sID}, 20
    s_cbranch_scc1 {b4}
    v_mov_b32 v26, -1
    v_lshrrev_b32 v27, 2, v0
    s_add_u32 s{sT}, s{sBUFR}, s{sSL}
    s_add_u32 s{sT2}, s{sT}, 10240
    buffer_store_dword v26, v27, {WS}, s{sT} offen{pl}
    buffer_store_dword v26, v27, {WS}, s{sT2} offen sc1
    {b4}:""".replace('v26','v70').replace('v27','v71'))
    if not R2:
        for j in range(2): rdK(j)
        flagst()
        if 'we' in opts: warm1(); warm2()
        for i in range(5): dq.wait(f'A{i}'); smf(DQ0,EA(i),slotreg(P_rem(i,0)))
        if 'we' not in opts: warm1()
        smf(DK0,EA(0),slotreg(P_rem(0,2)))
        if 'we' not in opts: warm2()
        for i in range(1,5): smf(DK0,EA(i),slotreg(P_rem(i,2)))
        fold(DQ0,68)
        smf(DQ1,EA(0),slotreg(P_rem(0,1)))
        kvflag()
        smf(DQ1,EA(1),slotreg(P_rem(1,1)))
        smf(DQ1,EA(2),slotreg(P_rem(2,1)))
        fold(DK0,69)
        A('ds_write_b64 v2, v[68:69]'); dq.add('W')
        smf(DQ1,EA(3),slotreg(P_rem(3,1)))
        smf(DQ1,EA(4),slotreg(P_rem(4,1)))
        smf(DK1,EA(0),slotreg(P_rem(0,3)))
        resets()
        smf(DK1,EA(1),slotreg(P_rem(1,3)))
        smf(DK1,EA(2),slotreg(P_rem(2,3)))
        fold(DQ1,70)
        smf(DK1,EA(3),slotreg(P_rem(3,3)))
        smf(DK1,EA(4),slotreg(P_rem(4,3)))
    else:
        rdK(1)
        for i in range(5): dq.wait(f'A{i}'); smf(DQ0,EA(i),slotreg(P_rem(i,0)))
        for i in range(5): smf(DK0,EA(i),slotreg(P_rem(i,2)))
        fold(DQ0,68)
        smf(DQ1,EA(0),slotreg(P_rem(0,1)))
        smf(DQ1,EA(1),slotreg(P_rem(1,1)))
        smf(DQ1,EA(2),slotreg(P_rem(2,1)))
        fold(DK0,69)
        A('ds_write_b64 v2, v[68:69]'); dq.add('W')
        smf(DQ1,EA(3),slotreg(P_rem(3,1)))
        A('s_waitcnt vmcnt(0)'); flagst()
        smf(DQ1,EA(4),slotreg(P_rem(4,1)))
        resets()
        smf(DK1,EA(0),slotreg(P_rem(0,3)))
        warm1()
        smf(DK1,EA(1),slotreg(P_rem(1,3)))
        rdK(0)
        warm2()
        smf(DK1,EA(2),slotreg(P_rem(2,3)))
        fold(DQ1,70)
        smf(DK1,EA(3),slotreg(P_rem(3,3)))
        smf(DK1,EA(4),slotreg(P_rem(4,3)))
        kvflag()
    A(f's_lshr_b32 s{sKMO}, s{sKVO}, 1\ns_lshl_b32 s{sT}, s{sWV}, 10\ns_add_u32 s{sKMO}, s{sKMO}, s{sT}\ns_add_u32 s{sKMO}, s{sKMO}, {KM}')
    fold(DK1,71)
    A('ds_write_b64 v2, v[70:71] offset:2048'); dq.add('W')
    dq.all(); A('s_barrier')
    TS(A,4)
    S0,S1,SM=28,32,68
    F=lambda j:8+4*j
    for j in range(4):
        for t in range(2): A(f'ds_read_b64_tr_b16 v[{F(j)+2*t}:{F(j)+2*t+1}], v3 offset:{1024*j+128*t}')
        dq.add(f'F{j}',2)
    k1=A.lab('K')
    A(f's_cmp_lg_u32 s{sX}, 0\ns_cbranch_scc1 {k1}\nbuffer_store_dwordx4 v[68:71], v0, {WS}, s{sKMO} offen sc1\n{k1}:')
    A(f'ds_read_b128 v[24:27], v5 offset:{KX-MI+2048*2}\nds_read_b128 v[40:43], v5 offset:{KX-MI+2048*2+1024}'); dq.add('K2',2)
    A(f'ds_read_b128 v[36:39], v5 offset:{KX-MI+2048*3}'); dq.add('K3a')
    def mm(j,k0,k1_):
        for D,a_ in ((S0,k0),(S1,k1_),(SM,F(j))):
            A(f'v_mfma_f32_16x16x32_bf16 v[{D}:{D+3}], v[{a_}:{a_+3}], v[{F(j)}:{F(j)+3}], '+('0' if j==0 else f'v[{D}:{D+3}]'))
    def rdA(i): A(f'ds_read_b128 v[{Areg(i)}:{Areg(i)+3}], v5 offset:{5120+1024*i}'); dq.add(f'A{i}')
    LV=[60,36,52]
    dq.wait('F0'); A('s_nop 1'); mm(0,52,56)
    A(f'ds_read_b128 v[52:55], v5 offset:{KX-MI+2048*3+1024}'); dq.add('K3b')
    rdA(0)
    dq.wait('F1'); mm(1,60,64)
    read_slot(A,dq,5,LV[0],'V0'); rdA(1)
    dq.wait('K2'); mm(2,24,40)
    rdA(2); rdA(4)
    dq.wait('K3b'); mm(3,36,52)
    TS(A,5)
    rdA(3); read_slot(A,dq,6,LV[1],'V1'); read_slot(A,dq,7,LV[2],'V2')
    vq=list(range(10))
    def vstep():
        if not vq: return
        k=vq.pop(0); i=k>>1
        dq.wait(f'A{i}'); dq.wait(f'V{k}')
        smf(DV[k&1],Areg(i),v(LV[k%3],8))
        if k+3<10: read_slot(A,dq,5+k+3,LV[k%3],f'V{k+3}')
        if k==1: A(f'ds_read_b128 v[8:11], v7 offset:{VXL-65536}'); dq.add('VX')
        if k==3: A(f'ds_read_b128 v[12:15], v7 offset:{VXL-65536+1024}'); dq.add('VX')
    vstep()
    A('v_max3_f32 v68, v28, v29, v30\nv_max3_f32 v69, v31, v32, v33\nv_max3_f32 v68, v68, v34, v35\nv_max3_f32 v69, v69, v70, v71\nv_max_f32 v68, v68, v69')
    A('v_mov_b32 v69, v68'); vstep()
    A('v_permlane16_swap_b32 v68, v69\nv_max_f32 v68, v68, v69\nv_mov_b32 v69, v68'); vstep()
    A('v_permlane32_swap_b32 v68, v69\nv_max_f32 v68, v68, v69')
    A(f'v_mul_f32 v68, s{sSC}, v68')
    for r in (28,30,32,34,70): A(f'v_pk_fma_f32 v[{r}:{r+1}], v[{r}:{r+1}], s[{sSC}:{sSC+1}], v[68:69] op_sel_hi:[1,0,0] neg_lo:[0,0,1] neg_hi:[0,0,1]')
    vstep()
    for r in (28,29,30): A(f'v_exp_f32 v{r}, v{r}')
    vstep()
    for r in (31,32): A(f'v_exp_f32 v{r}, v{r}')
    vstep()
    for r in (33,34): A(f'v_exp_f32 v{r}, v{r}')
    vstep()
    for r in (35,70): A(f'v_exp_f32 v{r}, v{r}')
    vstep()
    A('v_exp_f32 v71, v71')
    A('v_pk_add_f32 v[68:69], v[28:29], v[30:31]\nv_pk_add_f32 v[68:69], v[68:69], v[32:33]')
    vstep()
    A('v_pk_add_f32 v[68:69], v[68:69], v[34:35]\nv_pk_add_f32 v[68:69], v[68:69], v[70:71]')
    A('v_cvt_pk_bf16_f32 v28, v28, v29\nv_cvt_pk_bf16_f32 v29, v30, v31')
    vstep()
    assert not vq
    A('v_cvt_pk_bf16_f32 v30, v32, v33\nv_cvt_pk_bf16_f32 v31, v34, v35')
    A('v_cvt_pk_bf16_f32 v32, v70, v71\nv_mov_b64 v[34:35], 0\nv_add_f32 v68, v68, v69')
    dq.wait('VX')
    A('v_mfma_f32_16x16x32_bf16 v[16:19], v[8:11], v[28:31], 0\nv_mfma_f32_16x16x32_bf16 v[20:23], v[12:15], v[28:31], 0')
    A('v_mov_b32 v33, 0\nv_mov_b32 v35, v32\nv_mov_b32 v69, v68\nv_lshrrev_b32 v24, 1, v0')
    A('v_permlane16_swap_b32 v68, v69')
    A('v_pk_add_f32 v[44:45], v[44:45], v[46:47]\nv_pk_add_f32 v[48:49], v[48:49], v[50:51]')
    A('v_add_f32 v68, v68, v69\nv_cvt_pk_bf16_f32 v44, v44, v45\nv_cvt_pk_bf16_f32 v45, v48, v49\nv_mov_b32 v69, v68')
    A('v_mov_b64 v[52:53], 0')
    A('v_mfma_f32_16x16x16_bf16 v[16:19], v[44:45], v[32:33], v[16:19]\nv_mfma_f32_16x16x16_bf16 v[20:23], v[44:45], v[34:35], v[20:23]')
    A('v_permlane32_swap_b32 v68, v69\nv_add_f32 v68, v68, v69\nv_rcp_f32 v68, v68')
    k1=A.lab('K')
    A(f"""s_cmp_lg_u32 s{sX}, 1
    s_cbranch_scc1 {k1}
    s_lshr_b32 s{sT2}, s{sKVO}, 2
    s_lshl_b32 s{sT}, s{sWV}, 9
    s_add_u32 s{sT2}, s{sT2}, s{sT}
    s_add_u32 s{sT2}, s{sT2}, {VM}
    {'s_nop 0' if 'novm' in opts else f'buffer_store_dwordx2 v[44:45], v24, {WS}, s{sT2} offen sc1'}
    {k1}:""")
    for r in range(54,68,2): A(f'v_mov_b64 v[{r}:{r+1}], 0')
    A('v_mov_b64 v[36:37], 0\nv_mov_b64 v[38:39], 0')
    for r in (16,18,20,22): A(f'v_pk_mul_f32 v[{r}:{r+1}], v[{r}:{r+1}], v[68:69] op_sel_hi:[1,0]')
    A('v_cvt_pk_bf16_f32 v40, v16, v17\nv_cvt_pk_bf16_f32 v41, v18, v19\nv_cvt_pk_bf16_f32 v42, v20, v21\nv_cvt_pk_bf16_f32 v43, v22, v23')
    A('s_mov_b32 exec_lo, 0x33333333\ns_mov_b32 exec_hi, 0x33333333')
    A(f'ds_write_b64 v4, v[40:41]\nds_write_b64 v4, v[42:43] offset:1024\ns_mov_b64 exec, -1\ns_cmp_eq_u32 s{sS}, 63\ns_cbranch_scc1 RECEND')
    dq.all(); A('s_barrier')
    TS(A,6)
    A(f'ds_read_b128 v[44:47], v5 offset:{OI-MI}\nds_read_b128 v[48:51], v5 offset:{OI-MI+1024}'); dq.add('O0'); dq.add('O1')
    WD=[52,56,60,64,36]
    so=[(sPW0,0),(sPW0,2048),(sPW1,0),(sPW1,2048),(sPW2,0)]
    def wo(t,ks): A(f'{SMF} v[{WD[t]}:{WD[t]+3}], v[{44+4*ks}:{47+4*ks}], {slotreg(P_wo(ks,t))}, v1')
    def pst(t):
        d=WD[t]
        A(f'v_pk_add_f32 v[{d}:{d+1}], v[{d}:{d+1}], v[{d+2}:{d+3}]\nv_and_or_b32 v{d}, v{d}, v25, s{sTAG}')
        A(f'buffer_store_dwordx2 v[{d}:{d+1}], v24, {WS}, s{so[t][0]} offen offset:{so[t][1]}{pl}')
    A('v_mov_b32 v25, -2')
    A(f'''v_lshrrev_b32 v68, 7, v0
    v_mul_u32_u24 v68, 10240, v68
    v_and_b32 v69, 0x70, v0
    v_add_u32 v68, v68, v69
    v_bfe_u32 v69, v0, 6, 1
    v_lshlrev_b32 v69, 5, v69
    v_lshrrev_b32 v70, 9, v0
    v_lshl_add_u32 v69, v70, 4, v69
    v_bfe_u32 v70, v0, 4, 2
    v_lshl_add_u32 v69, v70, 2, v69
    s_lshl_b32 s28, s{sWV}, 6
    s_add_u32 s29, s28, {RED}
    v_add_u32 v70, s29, v69
    s_add_u32 s37, s{sBUFN}, s{sSL}
    s_add_u32 s36, s37, 10240
    s_add_u32 s37, s37, s28''')
    dq.wait('O0'); wo(0,0); dq.wait('O1'); wo(0,1); wo(1,0); wo(1,1)
    for t in range(2,5): wo(t,0); pst(t-2); wo(t,1)
    pst(3); pst(4)
    TS(A,7)
    X=[52,56,60,64]; Y=[8,12,16,20]
    def pl_(R):
        for q,so_ in zip(R,(sPR,32,33,34)): A(f'buffer_load_dwordx4 v[{q}:{q+3}], v68, {WS}, s{so_} offen sc1')
    n1=A.lab('NR'); n2=A.lab('NR')
    A(f's_cmp_ge_u32 s{sID}, 20\ns_cbranch_scc1 {n1}')
    pl_(X)
    A(f'{n1}:')
    A(f's_add_u32 s{sKVO}, s{sKVO}, {32*8192}')
    c1=A.lab('C')
    A(f"""s_and_b32 s{sT}, s{sS}, 3
    s_cmp_lg_u32 s{sT}, 2
    s_cbranch_scc1 {c1}
    s_cmp_ge_u32 s{sS}, 60
    s_cbranch_scc1 {c1}
    s_lshl_b32 s{sT2}, s{sWV}, 8
    s_add_u32 s{sT2}, s{sT2}, {SPARE+1024}
    v_lshrrev_b32 v26, 2, v0
    v_add_u32 v26, s{sT2}, v26
    ds_read_b32 v26, v26
    s_waitcnt lgkmcnt(0)
    v_cmp_eq_u32 vcc, 0, v26
    s_cbranch_vccz {c1}
    s_lshr_b32 s{sT}, s{sS}, 2
    s_lshl_b32 s{sT}, s{sT}, 8
    s_add_u32 s{sT}, s{sT}, {C_KV0+256}""")
    if 'norecwait' not in opts: poll_all(A,f's{sT}',64,15,vt=26)
    A(f'{c1}:')
    A(f"""s_lshl_b32 s{sFMP}, s{sS}, 10
    s_add_u32 s{sFMP}, s{sFMP}, s{sFM}
    s_mov_b32 s{sT}, s{sBUF}
    s_mov_b32 s{sBUF}, s{sBUFN}
    s_mov_b32 s{sBUFN}, s{sBUFR}
    s_mov_b32 s{sBUFR}, s{sT}
    s_add_u32 s{sLG}, s{sBUF}, s{sLOC}
    s_add_u32 s{sRG}, s{sBUF}, s{sREM}
    s_mov_b32 s35, s{sTAG}
    s_xor_b32 s{sTAG}, s{sTAG}, 1
    s_add_u32 s{sS}, s{sS}, 1""")
    for r in range(28,40,2): A(f'v_mov_b64 v[{r}:{r+1}], 0')
    A(f's_cmp_ge_u32 s{sID}, 20\ns_cbranch_scc1 {n2}')
    if 'ps' in opts: pl_(Y)
    A(f'{n2}:')
    for r in range(40,52,2): A(f'v_mov_b64 v[{r}:{r+1}], 0')
    A(f's_cbranch_scc1 STEP_{M}')
    def chkP(R,ok):
        for i,q in enumerate(R): A(f'v_bitop3_b32 v{24+i}, v{q}, v{q+2}, s35 bitop3:0x7e')
        A(f'v_or3_b32 v24, v24, v25, v26\nv_bitop3_b32 v24, v24, v27, 1 bitop3:0xa8\nv_cmp_ne_u32 vcc, 0, v24\ns_cbranch_vccz {ok}')
    def sumP(R):
        a_,b_,c_,d_=R
        for p,q in ((a_,b_),(c_,d_)):
            A(f'v_pk_add_f32 v[{p}:{p+1}], v[{p}:{p+1}], v[{q}:{q+1}]\nv_pk_add_f32 v[{p+2}:{p+3}], v[{p+2}:{p+3}], v[{q+2}:{q+3}]')
        A(f'v_pk_add_f32 v[24:25], v[{a_}:{a_+1}], v[{c_}:{c_+1}]\nv_pk_add_f32 v[26:27], v[{a_+2}:{a_+3}], v[{c_+2}:{c_+3}]')
    Lp=A.lab('RP'); DX=A.lab('RD'); DY=A.lab('RD'); DC=A.lab('RD')
    if 'ps' in opts:
        A(f'{Lp}:\ns_waitcnt vmcnt(4)'); chkP(X,DX); pl_(X)
        A('s_waitcnt vmcnt(4)'); chkP(Y,DY); pl_(Y)
    else:
        A(f'{Lp}:\ns_waitcnt vmcnt(0)'); chkP(X,DX); pl_(X)
    cnt(A,40)
    A(f's_add_u32 s{sCNT}, s{sCNT}, 1\ns_cmp_lt_u32 s{sCNT}, {SPIN}\ns_cbranch_scc1 {Lp}')
    abort(A,16)
    if 'ps' in opts:
        A(f'{DY}:'); sumP(Y); A(f's_branch {DC}')
    A(f'{DX}:'); sumP(X); A(f'{DC}:')
    TS(A,8)
    A('v_permlane32_swap_b32 v24, v25\nv_permlane32_swap_b32 v26, v27\nv_add_f32 v24, v24, v25\nv_add_f32 v26, v26, v27')
    A('v_permlane16_swap_b32 v24, v26\nv_add_f32 v24, v24, v26\nv_add_f32_dpp v24, v24, v24 row_ror:8 row_mask:0xf bank_mask:0xf')
    A('v_mov_b32 v25, v24\nv_permlane16_swap_b32 v24, v25\nv_cvt_pk_bf16_f32 v24, v24, v25\nv_min_u32 v24, -2, v24')
    A('s_mov_b32 exec_lo, 0xff\ns_mov_b32 exec_hi, 0xff')
    A(f'buffer_store_dword v24, v69, {WS}, s37 offen{pl}\nds_write_b32 v70, v24\ns_mov_b64 exec, -1')
    A(f's_cmp_lg_u32 s{sWV}, 0\ns_cbranch_scc1 STEP_{M}')
    Ls=A.lab('LS'); Ld=A.lab('LS')
    A(f'v_lshrrev_b32 v26, 2, v0\nv_add_u32 v71, {RED}, v26\n{Ls}:\nds_read_b32 v25, v71\ns_waitcnt lgkmcnt(0)\nv_cmp_eq_u32 vcc, -1, v25\ns_cbranch_vccz {Ld}')
    cnt(A,41)
    A(f's_add_u32 s{sCNT}, s{sCNT}, 1\ns_cmp_lt_u32 s{sCNT}, {SPIN}\ns_cbranch_scc1 {Ls}')
    abort(A,17)
    A(f'{Ld}:\nbuffer_store_dword v25, v26, {WS}, s36 offen sc1\nv_mov_b32 v27, -1\nds_write_b32 v71, v27')
    TS(A,9)
    if not RTON: TS(A,10)
    A(f's_branch STEP_{M}')
```
